```python
import torch

def _softmax(x, axis=-1):
    return torch.softmax(x, dim=axis)
def _gelu(x):
    return torch.nn.functional.gelu(x, approximate="tanh")
def _silu(x):
    return torch.nn.functional.silu(x)
def _sigmoid(x):
    return torch.sigmoid(x)
def _layernorm(x, axis=-1, eps=1e-5):
    m = x.mean(dim=axis, keepdim=True)
    v = x.var(dim=axis, keepdim=True, unbiased=False)
    return (x - m) / torch.sqrt(v + eps)
def _scatter_add(tgt, idx, src, axis=0):
    return tgt.clone().index_add_(axis, idx, src)
def _segment_sum(src, seg, n):
    out = torch.zeros((n,) + src.shape[1:], dtype=src.dtype)
    return out.index_add_(0, seg, src)
def _pad(x, pw):
    flat = tuple(v for pair in reversed(pw) for v in pair)
    return torch.nn.functional.pad(x, flat)

kernel_name = 'interleave_layers__ssm_conv_h3__geglu_ffn__prompt'

def setup_inputs():

    _w = (lambda a: (lambda t: t.to(torch.bfloat16) if t.is_floating_point() else t)(torch.as_tensor(a)))
    def _A_setup():
        B, S, D = 1, 2048, 1024
        ks = 4
        return {
            "q": _w((lambda *s: torch.randn(*s, dtype=torch.bfloat16) * 0.05)(B, S, D)),
            "k": _w((lambda *s: torch.randn(*s, dtype=torch.bfloat16) * 0.8)(B, S, D)),
            "v": _w((lambda *s: torch.randn(*s, dtype=torch.bfloat16) * 0.8)(B, S, D)),
            "shift_k": _w((lambda *s: torch.randn(*s, dtype=torch.bfloat16) * 0.8)(D, ks) * 0.5),
            "ssm_k": _w((lambda *s: torch.randn(*s, dtype=torch.bfloat16) * 0.8)(D, S) * (1.0 / S ** 0.5)),
            "ssm_D": _w((lambda *s: torch.randn(*s, dtype=torch.bfloat16) * 0.8)(D)),
        }
    _A_in = _A_setup()

    def _B_setup():
        B, S, D, F = 1, 2048, 1024, 3584
        return {
            "x": _w((lambda *s: torch.randn(*s, dtype=torch.bfloat16) * 0.05)(B, S, D)),
            "w_gate": _w((lambda *s: torch.randn(*s, dtype=torch.bfloat16) * 0.05)(D, F)),
            "w_up": _w((lambda *s: torch.randn(*s, dtype=torch.bfloat16) * 0.05)(D, F)),
            "w_down": _w((lambda *s: torch.randn(*s, dtype=torch.bfloat16) * 0.05)(F, D)),
        }
    _B_in = _B_setup()

    return {
        "A_q": _A_in["q"],
        "A_k": _A_in["k"],
        "A_v": _A_in["v"],
        "A_shift_k": _A_in["shift_k"],
        "A_ssm_k": _A_in["ssm_k"],
        "A_ssm_D": _A_in["ssm_D"],
        "B_x": _B_in["x"],
        "B_w_gate": _B_in["w_gate"],
        "B_w_up": _B_in["w_up"],
        "B_w_down": _B_in["w_down"],
    }

def reference(A_q, A_k, A_v, A_shift_k, A_ssm_k, A_ssm_D, B_x, B_w_gate, B_w_up, B_w_down):
    def _A_ref(q, k, v, shift_k, ssm_k, ssm_D):
        B, S, D = q.shape
        ks = shift_k.shape[-1]
        k_pad = _pad(k, ((0, 0), (ks - 1, 0), (0, 0)))
        k_shift = torch.zeros_like(k)
        for t in range(ks):
            k_shift = k_shift + k_pad[:, t:t + S, :] * shift_k[:, ks - 1 - t][None, None, :]
        kv = k_shift * v
        L = 2 * S
        kv_pad = _pad(kv, ((0, 0), (0, S), (0, 0)))
        kf_pad = _pad(ssm_k, ((0, 0), (0, S)))
        kv_f = (lambda x, axes=(-2,-1): torch.fft.rfft2(x.float(), dim=axes))(kv_pad[:, None, :, :], axes=(1, 2))
        kf_f = (lambda x, axes=(-2,-1): torch.fft.rfft2(x.float(), dim=axes))(kf_pad[:, None, :], axes=(1, 2))
        kf_f = (lambda x, *d: x.permute(*d))(kf_f, 1, 2, 0)
        y_f = kv_f * kf_f[None, :, :, :]
        y = (lambda x, s, axes=(-2,-1): torch.fft.irfft2(x, s=s, dim=axes).to(torch.bfloat16))(y_f, (1, L), axes=(1, 2))[:, 0, :S, :]
        y = y + kv * ssm_D[None, None, :]
        return q * y

    def _B_ref(x, w_gate, w_up, w_down):
        return (_gelu(x @ w_gate) * (x @ w_up)) @ w_down

    x = A_q
    x = x + _A_ref(_layernorm(x, axis=-1), A_k, A_v, A_shift_k, A_ssm_k, A_ssm_D)
    x = x + _B_ref(_layernorm(x, axis=-1), B_w_gate, B_w_up, B_w_down)
    x = x + _A_ref(_layernorm(x, axis=-1), A_k, A_v, A_shift_k, A_ssm_k, A_ssm_D)
    x = x + _B_ref(_layernorm(x, axis=-1), B_w_gate, B_w_up, B_w_down)
    return x
```

```python
class Asm:
    def __init__(self):
        self.L = []
    def __call__(self, s=""):
        for ln in s.split("\n"):
            self.L.append(ln)
    def text(self):
        return "\n".join(self.L) + "\n"

def vr(b, n=1, p="v"):
    return f"{p}{b}" if n == 1 else f"{p}[{b}:{b+n-1}]"
def ar(b, n=1):
    return vr(b, n, "a")
def sr(b, n=1):
    return vr(b, n, "s")

def kernel_begin(A, name):
    A(f".globl {name}\n.p2align 8\n.type {name},@function\n{name}:")

def kernel_desc(name, nvgpr, accum, nsgpr=96):
    return f""".amdhsa_kernel {name}
  .amdhsa_next_free_vgpr {nvgpr}
  .amdhsa_next_free_sgpr {nsgpr}
  .amdhsa_accum_offset {accum}
  .amdhsa_group_segment_fixed_size 0
  .amdhsa_kernarg_size 104
  .amdhsa_user_sgpr_count 2
  .amdhsa_user_sgpr_kernarg_segment_ptr 1
  .amdhsa_system_sgpr_workgroup_id_x 1
  .amdhsa_float_denorm_mode_32 3
.end_amdhsa_kernel"""

def srd(A, d, b, nbytes, off=0):
    if off:
        A(f"s_add_u32 s{d}, s{b}, {off}")
        A(f"s_addc_u32 s{d+1}, s{b+1}, 0")
    else:
        A(f"s_mov_b32 s{d}, s{b}")
        A(f"s_mov_b32 s{d+1}, s{b+1}")
    A(f"s_mov_b32 s{d+2}, {nbytes}")
    A(f"s_mov_b32 s{d+3}, 0x20000")

class VmTrack:
    def __init__(self):
        self.q = []
        self.need = {}
    def issue(self, tag):
        self.q.append(tag)
    def wait(self, site, tags):
        idx = -1
        for i, t in enumerate(self.q):
            if t in tags: idx = i
        if idx < 0:
            n = 63
        else:
            n = len(self.q) - 1 - idx
        n = min(n, 63)
        self.need[site] = min(self.need.get(site, 63), n)
```

```python
from asmlib import *
from gemm1 import WS_XN, WS_H, WS_X1, WS_Y, WS_X2, WS_STAMP, f2u, wrap

def stamp_tail(A, wsreg=24, wave="s26", extra=None):
    A("s_waitcnt vmcnt(0)")
    A("s_memtime s[46:47]\ns_memrealtime s[48:49]\ns_waitcnt lgkmcnt(0)")
    srd(A, 8, wsreg, 1 << 20, WS_STAMP)
    A(f"s_lshl_b32 s29, s2, 2\ns_add_u32 s29, s29, {wave}\ns_lshl_b32 s29, s29, 5")
    A("v_mov_b32 v8, s40\nv_mov_b32 v9, s42\nv_mov_b32 v10, s44\nv_mov_b32 v11, s46\nv_mov_b32 v12, s48\nv_mov_b32 v13, s50\nv_mov_b32 v14, 0")
    A("s_mov_b64 exec, 1")
    A("buffer_store_dwordx4 v[8:11], v14, s[8:11], s29 offen")
    A("buffer_store_dwordx2 v[12:13], v14, s[8:11], s29 offen offset:16")

CONV_LDS = 18432 + 4*8320

def gen_conv(A, name="conv_kernel", stamps=False):
    ACC = 16; BR = 48; LD = 80; SK = 136; T = 152; AD = 200
    UP = 4608; KB = 18432; KW = 8320; OB = 4160
    kernel_begin(A, name)
    A("s_cmp_ge_u32 s2, 256\ns_cbranch_scc1 %s_end" % name)
    A("s_load_dwordx8 s[4:11], s[0:1], 8")
    A("s_load_dwordx2 s[12:13], s[0:1], 40")
    A("s_load_dwordx2 s[24:25], s[0:1], 96")
    if stamps: A("s_memtime s[40:41]\ns_memrealtime s[50:51]")
    A("v_lshrrev_b32 v1, 6, v0")
    A("v_and_b32 v15, 63, v0")
    A("v_readfirstlane_b32 s26, v1")
    A("s_and_b32 s27, s2, 7\ns_lshl_b32 s27, s27, 5\ns_lshr_b32 s28, s2, 3\ns_add_u32 s27, s27, s28\ns_lshl_b32 s27, s27, 3")
    A("v_lshlrev_b32 v2, 12, v0")
    A("v_lshlrev_b32 v3, 4, v15")
    A("s_waitcnt lgkmcnt(0)")
    A("s_lshl_b32 s28, s27, 2\ns_add_u32 s8, s8, s28\ns_addc_u32 s9, s9, 0\ns_load_dwordx8 s[52:59], s[8:9], 0")
    A("s_add_u32 s12, s12, s27\ns_addc_u32 s13, s13, 0\ns_load_dwordx2 s[60:61], s[12:13], 0")
    A("s_lshr_b32 s28, s27, 1\ns_add_u32 s28, s28, s26\ns_lshl_b32 s28, s28, 12")
    A("s_add_u32 s16, s10, s28\ns_addc_u32 s17, s11, 0\ns_mov_b32 s18, 4096\ns_mov_b32 s19, 0x20000")
    for i in range(4):
        A(f"buffer_load_dwordx4 {vr(SK+4*i,4)}, v3, s[16:19], 0 offen offset:{1024*i}")
    A(f"s_add_u32 s32, s4, s27\ns_addc_u32 s33, s5, 0\ns_sub_u32 s34, {4<<20}, s27\ns_mov_b32 s35, 0x20000")
    A(f"s_add_u32 s36, s6, s27\ns_addc_u32 s37, s7, 0\ns_mov_b32 s38, s34\ns_mov_b32 s39, 0x20000")
    def L(c, n): return LD + 14*c + 2*n
    for c in range(4):
        A(f"v_add_u32 v4, {(c<<20) - 6144 & 0xffffffff}, v2\nv_add_u32 v5, {(c<<20) - 2048 & 0xffffffff}, v2")
        A(f"s_mov_b32 s28, {c<<20}")
        A("s_mov_b64 exec, 1")
        A(f"buffer_load_dwordx2 {vr(L(c,6),2)}, v4, s[32:35], 0 offen")
        A(f"buffer_load_dwordx2 {vr(L(c,5),2)}, v4, s[32:35], 0 offen offset:2048")
        A(f"buffer_load_dwordx2 {vr(L(c,4),2)}, v5, s[32:35], 0 offen")
        A("s_mov_b64 exec, -1")
        A(f"buffer_load_dwordx2 {vr(L(c,0),2)}, v2, s[32:35], s28 offen")
        A(f"buffer_load_dwordx2 {vr(L(c,1),2)}, v2, s[32:35], s28 offen offset:2048")
        A(f"buffer_load_dwordx2 {vr(L(c,2),2)}, v2, s[36:39], s28 offen")
        A(f"buffer_load_dwordx2 {vr(L(c,3),2)}, v2, s[36:39], s28 offen offset:2048")
    A(f"s_mul_i32 s29, s26, {UP}\ns_mul_i32 s30, s26, {KW}\ns_add_u32 s30, s30, {KB}")
    A("v_mov_b32 v6, 0\nv_mov_b32 v7, 0")
    A("v_lshlrev_b32 v8, 3, v15\nv_add_u32 v9, s29, v8")
    A("ds_write_b64 v9, v[6:7] offset:4096")
    A("v_add_u32 v9, s30, v8\ns_mov_b64 exec, 15")
    A(f"ds_write_b64 v9, v[6:7]\nds_write_b64 v9, v[6:7] offset:{OB}")
    A("s_mov_b64 exec, -1")
    for i in range(32): A(f"v_mov_b32 v{ACC+i}, 0")
    A("v_and_b32 v4, 15, v15\nv_lshrrev_b32 v5, 4, v15")
    A("v_lshlrev_b32 v10, 4, v5\nv_lshlrev_b32 v8, 5, v4\nv_sub_u32 v10, v10, v8\nv_add_u32 v10, 480, v10\nv_add_u32 v10, s29, v10")
    A("v_lshlrev_b32 v11, 2, v0\nv_sub_u32 v11, 1020, v11")
    A("v_add_u32 v12, s30, v3")
    A(f"v_and_b32 v8, 1, v4\nv_mul_u32_u24 v8, {OB+2}, v8\nv_lshl_add_u32 v8, v4, 1, v8\nv_lshl_add_u32 v8, v5, 4, v8\nv_add_u32 v13, s30, v8")
    A("s_waitcnt lgkmcnt(0)")
    for i in range(4):
        for p in range(2):
            for e in range(2):
                ch = 2*p + e
                src = 52 + 2*ch + (i >> 1)
                dst = 64 + (i*2+p)*2 + e
                A(f"s_lshl_b32 s{dst}, s{src}, 16" if i % 2 == 0 else f"s_and_b32 s{dst}, s{src}, 0xffff0000")
    A("s_cmp_lt_u32 s26, 2\ns_cselect_b32 s62, s60, s61\ns_and_b32 s63, s26, 1\ns_lshl_b32 s63, s63, 4\ns_lshr_b32 s62, s62, s63\ns_and_b32 s62, s62, 0xffff")
    A("v_lshlrev_b32 v8, 3, v5\nv_add_u32 v8, v8, v4\nv_sub_u32 v8, 15, v8")
    A("v_and_b32 v9, 1, v8\nv_lshlrev_b32 v9, 4, v9\nv_lshlrev_b32 v9, v9, s62\nv_ashrrev_i32 v8, 1, v8")
    for j in range(4):
        A(f"v_cmp_eq_u32 vcc, {j}, v8\ns_nop 1\nv_cndmask_b32 v{AD+j}, 0, v9, vcc")
    A("s_waitcnt vmcnt(28)")
    for i in range(4):
        A(f"ds_write_b128 v12, {vr(SK+4*i,4)} offset:{OB+32+1024*i}")
    for i in range(4):
        if i < 3:
            A(f"v_readfirstlane_b32 s28, v{SK+4*(i+1)}\ns_nop 1\nv_mov_b32 v{T+4}, s28")
        else:
            A(f"v_mov_b32 v{T+4}, 0")
        A(f"s_nop 1\nv_mov_b32_dpp v{T+4}, v{SK+4*i} wave_shl:1 row_mask:0xf bank_mask:0xf")
        for j in range(4):
            hi = f"v{SK+4*i+j+1}" if j < 3 else f"v{T+4}"
            A(f"v_alignbyte_b32 v{T+j}, {hi}, v{SK+4*i+j}, 2")
        A(f"ds_write_b128 v12, {vr(T,4)} offset:{32+1024*i}")
        A("s_nop 0")
    A(f"v_lshlrev_b32 v8, 16, v{SK}\ns_mov_b64 exec, 1\nds_write_b32 v12, v8 offset:28\ns_mov_b64 exec, -1")
    A("s_waitcnt lgkmcnt(0)")
    for m in range(64):
        if m and m % 15 == 0: A(f"v_add_u32 v13, {15*64}, v13")
        o = (m % 15)*16
        A(f"ds_read2_b32 {ar(4*m,2)}, v13 offset0:{o} offset1:{o+1}")
        A(f"ds_read2_b32 {ar(4*m+2,2)}, v13 offset0:{o+2} offset1:{o+3}")
    if stamps: A("s_memtime s[42:43]")
    def kvchunk(c):
        A(f"s_waitcnt vmcnt({7*(3-c)})")
        kA, kB, vA, vB, Bm1, Am1, Bm2 = [L(c, n) for n in range(7)]
        for p in range(2):
            A(f"v_mov_b32_dpp v{Bm1+p}, v{kB+p} wave_shr:1 row_mask:0xf bank_mask:0xf")
            A(f"v_mov_b32_dpp v{Am1+p}, v{kA+p} wave_shr:1 row_mask:0xf bank_mask:0xf")
        def F(row, p): return T + (row*2+p)*2
        rows = {1: Am1, 2: Bm1, 3: kA, 4: kB, 5: vA, 6: vB}
        for row in (3, 4):
            for p in range(2):
                A(f"v_lshlrev_b32 v{F(row,p)}, 16, v{rows[row]+p}\nv_and_b32 v{F(row,p)+1}, 0xffff0000, v{rows[row]+p}")
        for p in range(2):
            A(f"v_mov_b32_dpp v{Bm2+p}, v{Bm1+p} wave_shr:1 row_mask:0xf bank_mask:0xf")
        rows[0] = Bm2
        for row in (1, 2, 5, 6, 0):
            for p in range(2):
                A(f"v_lshlrev_b32 v{F(row,p)}, 16, v{rows[row]+p}\nv_and_b32 v{F(row,p)+1}, 0xffff0000, v{rows[row]+p}")
        R = T + 28
        def S(i, p): return sr(64 + (i*2+p)*2, 2)
        for i in range(4):
            for r in range(2):
                for p in range(2):
                    d = vr(R + (r*2+p)*2, 2); src = vr(F(3 + r - i, p), 2)
                    if i == 0: A(f"v_pk_mul_f32 {d}, {src}, {S(i,p)}")
                    else: A(f"v_pk_fma_f32 {d}, {src}, {S(i,p)}, {d}")
        for r in range(2):
            for p in range(2):
                d = vr(R + (r*2+p)*2, 2)
                A(f"v_pk_mul_f32 {d}, {d}, {vr(F(5+r,p),2)}")
        for ch in range(4):
            p, e = ch >> 1, ch & 1
            A(f"v_cvt_pk_bf16_f32 v{T+ch}, v{R + (1*2+p)*2 + e}, v{R + (0*2+p)*2 + e}")
        for ch in range(4):
            A(f"ds_write_b32 v11, v{T+ch} offset:{ch*UP + 3072 - 1024*c}")
        A("s_waitcnt lgkmcnt(0)\ns_barrier")
    PD = 3
    for c in range(4):
        kvchunk(c)
        items = [(q1, r) for q1 in (2*c, 2*c+1) for r in range(8)]
        def bread(n):
            q1, r = items[n]
            A(f"ds_read_b128 {vr(BR + 4*(n%8), 4)}, v10 offset:{3584 - 64*(8*q1 - r)}")
        for n in range(PD): bread(n)
        for n, (q1, r) in enumerate(items):
            A(f"s_waitcnt lgkmcnt({min(PD-1, 15-n)})")
            first = True
            b = vr(BR + 4*(n%8), 4)
            seq = [(nb, ar(4*(8*(nb-q1)+r), 4)) for nb in range(q1, 8)]
            if r == 0: seq.append((q1, vr(AD, 4)))
            for nb, a in seq:
                A(f"v_mfma_f32_16x16x32_bf16 {vr(ACC+4*nb,4)}, {a}, {b}, {vr(ACC+4*nb,4)}")
                if first and n + PD < 16: bread(n + PD)
                first = False
    if stamps: A("s_memtime s[44:45]")
    YB = KB
    A(f"s_lshl_b32 s29, s26, 12\ns_add_u32 s29, s29, {YB}")
    A("v_lshlrev_b32 v8, 5, v4\nv_lshl_add_u32 v8, v5, 3, v8\nv_add_u32 v8, s29, v8")
    A(f"v_lshlrev_b32 v9, 2, v0\nv_add_u32 v9, {YB}, v9")
    A("v_lshrrev_b32 v6, 5, v0\nv_lshlrev_b32 v6, 17, v6\nv_bfe_u32 v7, v0, 3, 2\nv_lshl_add_u32 v6, v7, 10, v6\nv_and_b32 v7, 7, v0\nv_lshl_add_u32 v6, v7, 5, v6")
    A("s_lshr_b32 s30, s27, 6\ns_lshl_b32 s30, s30, 12\ns_bfe_u32 s31, s27, 0x20004\ns_lshl_b32 s31, s31, 8\ns_add_u32 s30, s30, s31\ns_and_b32 s31, s27, 8\ns_add_u32 s30, s30, s31")
    srd(A, 16, 24, 4 << 20, WS_Y)
    A("s_mov_b32 s20, 0x05040100\ns_mov_b32 s21, 0x07060302")
    for nb in range(8):
        A(f"v_cvt_pk_bf16_f32 v{T+2*nb}, v{ACC+4*nb}, v{ACC+4*nb+1}\nv_cvt_pk_bf16_f32 v{T+2*nb+1}, v{ACC+4*nb+2}, v{ACC+4*nb+3}")
        A(f"ds_write_b64 v8, {vr(T+2*nb,2)} offset:{512*nb}")
    A("s_waitcnt lgkmcnt(0)\ns_barrier")
    for i in range(4):
        for ch in range(4):
            A(f"ds_read_b32 v{BR+4*i+ch}, v9 offset:{ch*4096 + 1024*i}")
    for i in range(4):
        A(f"s_waitcnt lgkmcnt({12-4*i})")
        o = LD + 4*i
        A(f"v_perm_b32 v{o}, v{BR+4*i+1}, v{BR+4*i}, s20\nv_perm_b32 v{o+1}, v{BR+4*i+3}, v{BR+4*i+2}, s20")
        A(f"v_perm_b32 v{o+2}, v{BR+4*i+1}, v{BR+4*i}, s21\nv_perm_b32 v{o+3}, v{BR+4*i+3}, v{BR+4*i+2}, s21")
        A(f"buffer_store_dwordx2 {vr(o,2)}, v6, s[16:19], s30 offen")
        A(f"buffer_store_dwordx2 {vr(o+2,2)}, v6, s[16:19], s30 offen offset:16")
        if i < 3: A(f"s_add_u32 s30, s30, {1<<20}")
    if stamps: stamp_tail(A)
    A(f"{name}_end:\ns_endpgm")
    return kernel_desc(name, 512, 256)

if __name__ == "__main__":
    s = wrap([f"; @launch kernel=conv_kernel grid=(256,1,1) block=(256,1,1) lds={CONV_LDS}"], [lambda A: gen_conv(A, stamps=True)])
    open("cv.s", "w").write(s)
```

```python
from asmlib import *
import struct
def f2u(x):
    return struct.unpack("<I", struct.pack("<f", x))[0]

WS_XN = 0
WS_H = 4 << 20
WS_X1 = 20 << 20
WS_Y = 24 << 20
WS_X2 = 28 << 20
WS_STAMP = 64 << 20

def gen_gemm1(A, name="gemm1_kernel", D=4, stamps=False, xpos=(1,3,5,7), dpos0=(9,11,13), dpos1=(8,9,11,13),
              no_dma=False, no_x=False, no_bar=False, no_tr=False, barpos=1):
    ACC = 32
    def acc(n, x): return ACC + (n*4 + x)*4
    XR = 0
    WR = 64
    R = 8
    SLOT = 28672
    kernel_begin(A, name)
    A("s_cmp_ge_u32 s2, 256\ns_cbranch_scc1 %s_end" % name)
    A("s_load_dwordx4 s[4:7], s[0:1], 56")
    A("s_load_dwordx2 s[24:25], s[0:1], 96")
    if stamps: A("s_memtime s[40:41]")
    A("v_lshrrev_b32 v1, 6, v0")
    A("v_and_b32 v31, 63, v0")
    A("v_readfirstlane_b32 s26, v1")
    A("s_and_b32 s27, s2, 1\ns_lshl_b32 s27, s27, 2\ns_lshr_b32 s28, s2, 3\ns_and_b32 s29, s28, 3\ns_add_u32 s27, s27, s29")
    A("s_bfe_u32 s29, s2, 0x20001\ns_lshl_b32 s29, s29, 3\ns_lshr_b32 s28, s28, 2\ns_add_u32 s28, s28, s29")
    A("s_movk_i32 s30, 4682")
    A("s_movk_i32 s31, 7168")
    for i in range(7):
        v = 4 + i
        A(f"v_add_u32 v12, {64*i}, v31")
        A("v_mul_u32_u24 v13, s30, v12\nv_lshrrev_b32 v13, 16, v13")
        A("v_mul_u32_u24 v14, 14, v13\nv_sub_u32 v14, v12, v14")
        A("v_bfe_u32 v15, v13, 2, 2\nv_lshlrev_b32 v15, 3, v15\nv_lshrrev_b32 v16, 4, v13\nv_lshl_add_u32 v15, v16, 2, v15\nv_and_b32 v16, 3, v13\nv_add_u32 v15, v15, v16")
        A(f"v_mul_u32_u24 v15, s31, v15\nv_lshl_add_u32 v{v}, v14, 4, v15")
        if (i % 4): A(f"v_subrev_u32 v{v}, {1024*(i%4)}, v{v}")
    A("v_lshrrev_b32 v12, 2, v31\nv_mul_u32_u24 v12, 224, v12\nv_and_b32 v13, 3, v31\nv_lshl_add_u32 v1, v13, 3, v12")
    A(f"v_add_u32 v2, {2*SLOT}, v1")
    A("v_lshlrev_b32 v3, 4, v31")
    A("s_waitcnt lgkmcnt(0)")
    A("s_lshl_b32 s29, s27, 2\ns_add_u32 s29, s29, s26\ns_lshl_b32 s29, s29, 17")
    A(f"s_add_u32 s8, s24, s29\ns_addc_u32 s9, s25, 0\ns_mov_b32 s10, 131072\ns_mov_b32 s11, 0x20000")
    A("s_and_b32 s29, s26, 1\ns_cmp_eq_u32 s29, 0\ns_cselect_b32 s12, s4, s6\ns_cselect_b32 s13, s5, s7")
    A("s_mul_i32 s30, s28, 224\ns_add_u32 s12, s12, s30\ns_addc_u32 s13, s13, 0")
    A(f"s_sub_u32 s14, {1024*7168}, s30\ns_mov_b32 s15, 0x20000")
    srd(A, 16, 24, 2048*3584*2, WS_H)
    A(f"s_lshr_b32 s30, s26, 1\ns_mul_i32 s21, s30, {32*7168}\ns_mul_i32 s22, s30, 14336\ns_mul_i32 s29, s29, 7168\ns_add_u32 s22, s22, s29")
    A("s_mov_b32 s20, 0")
    vm = VmTrack()
    def xload(t, x, emit=True):
        if no_x and t >= 3: return
        if emit:
            A(f"buffer_load_dwordx4 {ar(XR + (t%4)*16 + x*4, 4)}, v3, s[8:11], s20 offen offset:{x*1024}")
            if x == 3: A("s_add_u32 s20, s20, 4096")
        vm.issue(("X", t))
    def dma(s, i, emit=True, m0expr=None):
        if no_dma and s >= 3: return
        if emit:
            if i % 4 == 0:
                A(m0expr(i))
                A("s_nop 0")
            A(f"buffer_load_dwordx4 v{4+i}, s[12:15], s21 offen offset:{(i%4)*1024} lds")
            if i == 6: A(f"s_add_u32 s21, s21, {64*7168}")
        vm.issue(("W", s))
    for x in range(4): xload(0, x)
    for i in range(7): dma(0, i, m0expr=lambda i: f"s_add_u32 m0, s22, {0*SLOT + i*1024}")
    for x in range(4): xload(1, x)
    for i in range(7): dma(1, i, m0expr=lambda i: f"s_add_u32 m0, s22, {1*SLOT + i*1024}")
    for x in range(4): xload(2, x)
    for i in range(7): dma(2, i, m0expr=lambda i: f"s_add_u32 m0, s22, {2*SLOT + i*1024}")
    A(f"s_add_u32 s23, s22, {3*SLOT}\ns_mov_b32 s32, s22")
    A(f"s_lshl_b32 s33, s22, 1\ns_add_u32 s34, s33, {2*SLOT}\ns_add_u32 s33, s33, {4*SLOT}")
    for i in range(ACC, 256): A(f"v_mov_b32 v{i}, 0")
    vm.wait("pro", [("W", 0)])
    A(f"s_waitcnt vmcnt({vm.need['pro']})")
    A("s_barrier")
    def trread(q, half):
        base = "v1" if q < 56 else "v2"
        qq = q % 56
        sp, st, n = qq // 28, (qq // 14) % 2, qq % 14
        off = sp*SLOT + st*14336 + (n & 1)*7168 + (n >> 1)*32 + half*3584
        A(f"ds_read_b64_tr_b16 {ar(WR + (q % R)*4 + half*2, 2)}, {base} offset:{off}")
    for q in range(D):
        trread(q, 0); trread(q, 1)
    A("s_mov_b32 s35, 8")
    if stamps: A("s_memtime s[42:43]")
    def body(it, emit):
        for sp in range(2):
            s = it*2 + sp
            for st in range(2):
                t = s*2 + st
                dlist = list(dpos0) if st == 0 else list(dpos1)
                dbase = 0 if st == 0 else len(dpos0)
                for n in range(14):
                    q = (sp*2 + st)*14 + n
                    w = []
                    if n == 0:
                        site = ("x", sp, st); vm.wait(site, [("X", t)])
                        if emit and not no_x: w.append(f"vmcnt({vm.need[site]})")
                    if st == 0 and n == barpos:
                        site = ("b", sp); vm.wait(site, [("W", s+1)])
                        if emit and not no_dma: w.append(f"vmcnt({vm.need[site]})")
                    if emit:
                        if not no_tr: w.append(f"lgkmcnt({2*(D-1)})")
                        if w: A("s_waitcnt " + " ".join(w))
                        if st == 0 and n == barpos and not no_bar: A("s_barrier")
                    for x in range(4):
                        if emit:
                            A(f"v_mfma_f32_16x16x32_bf16 {vr(acc(n,x),4)}, {ar(WR+(q%R)*4,4)}, {ar(XR+(t%4)*16+x*4,4)}, {vr(acc(n,x),4)}")
                            if x < 2 and not no_tr: trread(q + D, x)
                        if x == 2:
                            if n in xpos: xload(t+3, xpos.index(n), emit)
                            if n in dlist:
                                i = dbase + dlist.index(n)
                                sb = "s23" if sp == 0 else "s32"
                                dma(s+3, i, emit, m0expr=lambda i: f"s_add_u32 m0, {sb}, {i*1024}")
        if emit:
            A("v_swap_b32 v1, v2")
            A("s_sub_u32 s23, s33, s23\ns_sub_u32 s32, s34, s32")
    for it in range(8): body(it, False)
    A(f".p2align 6\n{name}_loop:")
    body(0, True)
    A(f"s_sub_u32 s35, s35, 1\ns_cmp_lg_u32 s35, 0\ns_cbranch_scc1 {name}_loop")
    if stamps: A("s_memtime s[44:45]")
    c0 = -2.0 * 1.4426950408889634 * 0.7978845608028654
    c1 = c0 * 0.044715
    A(f"s_mov_b32 s36, {f2u(c1)}\ns_mov_b32 s37, {f2u(c1)}")
    A(f"v_mov_b32 v4, {f2u(c0)}\nv_mov_b32 v5, {f2u(c0)}")
    A(f"s_lshl_b32 s29, s27, 1\ns_lshr_b32 s30, s26, 1\ns_add_u32 s29, s29, s30\ns_mul_i32 s29, s29, {112*8192}")
    A("s_and_b32 s30, s26, 1\ns_lshl_b32 s30, s30, 12\ns_add_u32 s29, s29, s30")
    A("s_mul_i32 s28, s28, 7")
    A("s_nop 4")
    for j in range(7):
        A(f"s_add_u32 s30, s28, {j}\ns_lshr_b32 s31, s30, 1\ns_lshl_b32 s31, s31, 13\ns_and_b32 s30, s30, 1\ns_lshl_b32 s30, s30, 3\ns_add_u32 s31, s31, s30\ns_add_u32 s31, s31, s29")
        for x in range(4):
            g = acc(2*j, x); u = acc(2*j+1, x)
            T = 8 + (x % 2)*12
            A(f"v_pk_mul_f32 {vr(T,2)}, {vr(g,2)}, {vr(g,2)}")
            A(f"v_pk_mul_f32 {vr(T+2,2)}, {vr(g+2,2)}, {vr(g+2,2)}")
            A(f"v_pk_fma_f32 {vr(T,2)}, {vr(T,2)}, s[36:37], v[4:5]")
            A(f"v_pk_fma_f32 {vr(T+2,2)}, {vr(T+2,2)}, s[36:37], v[4:5]")
            A(f"v_pk_mul_f32 {vr(T,2)}, {vr(T,2)}, {vr(g,2)}")
            A(f"v_pk_mul_f32 {vr(T+2,2)}, {vr(T+2,2)}, {vr(g+2,2)}")
            for e in range(4): A(f"v_exp_f32 v{T+e}, v{T+e}")
            A(f"v_pk_mul_f32 {vr(T+4,2)}, {vr(g,2)}, {vr(u,2)}")
            A(f"v_pk_add_f32 {vr(T,2)}, {vr(T,2)}, 1.0 op_sel_hi:[1,0]")
            A(f"v_pk_add_f32 {vr(T+2,2)}, {vr(T+2,2)}, 1.0 op_sel_hi:[1,0]")
            for e in range(4): A(f"v_rcp_f32 v{T+e}, v{T+e}")
            A(f"v_pk_mul_f32 {vr(T+6,2)}, {vr(g+2,2)}, {vr(u+2,2)}")
            A(f"v_pk_mul_f32 {vr(T+4,2)}, {vr(T+4,2)}, {vr(T,2)}")
            A(f"v_pk_mul_f32 {vr(T+6,2)}, {vr(T+6,2)}, {vr(T+2,2)}")
            A(f"v_cvt_pk_bf16_f32 v{T+8}, v{T+4}, v{T+5}")
            A(f"v_cvt_pk_bf16_f32 v{T+9}, v{T+6}, v{T+7}")
            A(f"buffer_store_dwordx2 {vr(T+8,2)}, v3, s[16:19], s31 offen offset:{x*1024}")
    if stamps:
        A("s_waitcnt vmcnt(0)")
        A("s_memtime s[46:47]\ns_memrealtime s[48:49]\ns_waitcnt lgkmcnt(0)")
        srd(A, 8, 24, 1 << 20, WS_STAMP)
        A("s_lshl_b32 s29, s2, 2\ns_add_u32 s29, s29, s26\ns_lshl_b32 s29, s29, 5")
        A("v_mov_b32 v8, s40\nv_mov_b32 v9, s42\nv_mov_b32 v10, s44\nv_mov_b32 v11, s46\nv_mov_b32 v12, s48\nv_mov_b32 v13, 0")
        A("s_mov_b64 exec, 1")
        A("buffer_store_dwordx4 v[8:11], v13, s[8:11], s29 offen")
        A("buffer_store_dword v12, v13, s[8:11], s29 offen offset:16")
    A(f"{name}_end:\ns_endpgm")
    return kernel_desc(name, 352, 256)

def wrap(launches, gens):
    A = Asm()
    for l in launches: A(l)
    A('.amdgcn_target "amdgcn-amd-amdhsa--gfx950"\n.text')
    descs = [g(A) for g in gens]
    A('.section .rodata,"a"')
    for d in descs: A(".p2align 6\n" + d)
    return A.text()

if __name__ == "__main__":
    s = wrap(["; @launch kernel=gemm1_kernel grid=(256,1,1) block=(256,1,1) lds=114688"], [lambda A: gen_gemm1(A, stamps=True)])
    open("g1.s", "w").write(s)
```

```python
from asmlib import *
from gemm1 import WS_XN, WS_H, WS_X1, WS_Y, WS_X2, WS_STAMP, f2u, wrap

def gen_gemm2(A, name="gemm2_kernel", res_off=WS_X1, out_mode="xf", out_off=WS_X2, stamps=False, NR=4,
              no_dma=False, no_h=False, xmap=0, LA=None):
    ACC = 128
    def acc(j, x): return ACC + (j*8 + x)*4
    HR = 0
    WR = 32*NR
    if LA is None: LA = NR - 1
    kernel_begin(A, name)
    A("s_cmp_ge_u32 s2, 256\ns_cbranch_scc1 %s_end" % name)
    A("s_load_dwordx4 s[4:7], s[0:1], 72")
    A("s_load_dwordx2 s[24:25], s[0:1], 96")
    if stamps: A("s_memtime s[40:41]\ns_memrealtime s[50:51]")
    A("v_lshrrev_b32 v1, 6, v0")
    A("v_and_b32 v31, 63, v0")
    A("v_readfirstlane_b32 s26, v1")
    if xmap == 0:
        A("s_bfe_u32 s27, s2, 0x20001\ns_lshl_b32 s27, s27, 2\ns_lshr_b32 s28, s2, 3\ns_and_b32 s29, s28, 3\ns_add_u32 s27, s27, s29")
        A("s_and_b32 s29, s2, 1\ns_lshl_b32 s29, s29, 3\ns_lshr_b32 s28, s28, 2\ns_add_u32 s28, s28, s29")
    elif xmap == 1:
        A("s_and_b32 s27, s2, 7\ns_lshl_b32 s27, s27, 1\ns_bfe_u32 s29, s2, 0x10003\ns_add_u32 s27, s27, s29\ns_lshr_b32 s28, s2, 4")
    elif xmap == 2:
        A("s_bfe_u32 s27, s2, 0x20001\ns_lshl_b32 s27, s27, 2\ns_lshr_b32 s28, s2, 3\ns_and_b32 s29, s28, 3\ns_add_u32 s27, s27, s29")
        A("s_and_b32 s29, s2, 1\ns_lshr_b32 s28, s28, 2\ns_lshl_b32 s28, s28, 1\ns_add_u32 s28, s28, s29")
    elif xmap == 3:
        A("s_bfe_u32 s27, s2, 0x10002\ns_lshl_b32 s27, s27, 3\ns_lshr_b32 s28, s2, 3\ns_and_b32 s29, s28, 7\ns_add_u32 s27, s27, s29")
        A("s_and_b32 s29, s2, 3\ns_lshl_b32 s29, s29, 2\ns_lshr_b32 s28, s28, 3\ns_add_u32 s28, s28, s29")
    A("v_lshlrev_b32 v2, 4, v31\nv_add_u32 v3, 4096, v2")
    A("v_lshrrev_b32 v12, 3, v31\nv_bfe_u32 v13, v31, 1, 2\nv_bfe_u32 v14, v31, 4, 2\nv_xor_b32 v13, v13, v14")
    A("v_and_b32 v14, 1, v31\nv_lshl_add_u32 v13, v13, 1, v14\nv_lshlrev_b32 v13, 4, v13\nv_lshl_add_u32 v4, v12, 11, v13")
    for i in range(1, 4): A(f"v_add_u32 v{4+i}, {i*(16384-1024)}, v4")
    A("s_lshl_b32 s22, s26, 15")
    A("v_lshrrev_b32 v12, 2, v31\nv_lshlrev_b32 v12, 7, v12\nv_and_b32 v13, 3, v31\nv_lshl_add_u32 v12, v13, 3, v12\nv_add_u32 v12, s22, v12")
    A("v_bfe_u32 v13, v31, 3, 2")
    for j in range(4): A(f"v_xor_b32 v14, {j}, v13\nv_lshl_add_u32 v{8+j}, v14, 5, v12")
    A("s_waitcnt lgkmcnt(0)")
    A(f"s_mul_i32 s29, s27, 112\ns_mul_i32 s30, s26, 28\ns_add_u32 s29, s29, s30\ns_lshl_b32 s29, s29, 13\ns_add_u32 s29, s29, {WS_H}")
    A(f"s_add_u32 s8, s24, s29\ns_addc_u32 s9, s25, 0\ns_mov_b32 s10, {28*8192}\ns_mov_b32 s11, 0x20000")
    A(f"s_mul_i32 s29, s26, {896*2048}\ns_lshl_b32 s30, s28, 7\ns_add_u32 s29, s29, s30")
    A(f"s_add_u32 s12, s4, s29\ns_addc_u32 s13, s5, 0\ns_sub_u32 s14, {896*2048}, s30\ns_mov_b32 s15, 0x20000")
    A("s_mov_b32 s20, 0\ns_mov_b32 s21, 0")
    vm = VmTrack()
    def hload(t, x, emit=True):
        if no_h and t >= LA: return
        if emit:
            A(f"buffer_load_dwordx4 {ar(HR + (t%NR)*32 + x*4, 4)}, v{2 + x//4}, s[8:11], s20 offen offset:{(x%4)*1024}")
            if x == 7: A("s_add_u32 s20, s20, 8192")
        vm.issue(("H", t))
    def dma(t, i, emit=True):
        if no_dma and t >= LA: return
        if emit:
            if i == 0:
                A(f"s_add_u32 m0, s22, {(t%NR)*4096}")
                A("s_nop 0")
            A(f"buffer_load_dwordx4 v{4+i}, s[12:15], s21 offen offset:{i*1024} lds")
            if i == 3: A(f"s_add_u32 s21, s21, {32*2048}")
        vm.issue(("W", t))
    for t in range(LA):
        for i in range(4): dma(t, i)
        for x in range(8): hload(t, x)
        if t == 0:
            for i in range(ACC, 256): A(f"v_mov_b32 v{i}, 0")
    srd(A, 16, 24, 4 << 20, res_off)
    A("s_lshl_b32 s29, s27, 3\ns_lshl_b32 s30, s26, 1\ns_add_u32 s29, s29, s30")
    A("s_lshr_b32 s30, s29, 2\ns_lshl_b32 s30, s30, 5\ns_lshl_b32 s31, s28, 1\ns_add_u32 s30, s30, s31\ns_lshl_b32 s30, s30, 12")
    A("s_and_b32 s31, s29, 3\ns_lshl_b32 s31, s31, 10\ns_add_u32 s36, s30, s31")
    for xl in range(2):
        for ks in range(2):
            A(f"buffer_load_dwordx4 {vr(32 + (xl*2+ks)*4, 4)}, v{2+ks}, s[16:19], s36 offen offset:{xl*1024}")
            vm.issue("R")
    def trread(q, half):
        t, j = q // 4, q % 4
        A(f"ds_read_b64_tr_b16 {ar(WR + (q % 4)*4 + half*2, 2)}, v{8+j} offset:{(t % NR)*4096 + half*2048}")
    D = 2
    vm.wait("pro", [("W", 0)])
    A(f"s_waitcnt vmcnt({vm.need['pro']})")
    for q in range(D):
        trread(q, 0); trread(q, 1)
    A(f"s_mov_b32 s35, {28//NR}")
    if stamps: A("s_memtime s[42:43]")
    vpos = [1, 4, 6, 9, 12, 14, 17, 20, 22, 25, 28, 30]
    def body(it, emit):
        for st in range(NR):
            t = it*NR + st
            for j in range(4):
                q = st*4 + j
                w = []
                if j == 0:
                    site = ("h", st); vm.wait(site, [("H", t)])
                    if emit and not no_h: w.append(f"vmcnt({vm.need[site]})")
                if j == 4 - D:
                    site = ("w", st); vm.wait(site, [("W", t+1)])
                    if emit and not no_dma: w.append(f"vmcnt({vm.need[site]})")
                if emit:
                    w.append(f"lgkmcnt({2*(D-1)})")
                    A("s_waitcnt " + " ".join(w))
                for x in range(8):
                    m = j*8 + x
                    if emit:
                        A(f"v_mfma_f32_16x16x32_bf16 {vr(acc(j,x),4)}, {ar(WR+(q%4)*4,4)}, {ar(HR+st*32+x*4,4)}, {vr(acc(j,x),4)}")
                        if x < 2: trread(q + D, x)
                    if m in vpos:
                        k = vpos.index(m)
                        if k < 4: dma(t+LA, k, emit)
                        else: hload(t+LA, k-4, emit)
    for it in range(28//NR): body(it, False)
    A(f".p2align 6\n{name}_loop:")
    body(0, True)
    A(f"s_sub_u32 s35, s35, 1\ns_cmp_lg_u32 s35, 0\ns_cbranch_scc1 {name}_loop")
    if stamps: A("s_memtime s[44:45]")
    A("v_add_u32 v12, s22, v2")
    A("v_lshrrev_b32 v13, 5, v31\nv_lshlrev_b32 v13, 10, v13\nv_and_b32 v14, 15, v31\nv_lshl_add_u32 v13, v14, 4, v13")
    A("v_bfe_u32 v14, v31, 4, 1\nv_lshl_add_u32 v13, v14, 9, v13\ns_lshl_b32 s29, s26, 13\nv_add_u32 v13, s29, v13\nv_add_u32 v14, 65536, v13")
    A("s_waitcnt vmcnt(0) lgkmcnt(0)")
    for j in range(4):
        for x in range(8):
            A(f"ds_write_b128 v12, {vr(acc(j,x),4)} offset:{(x*4+j)*1024}")
    A("s_waitcnt lgkmcnt(0)\ns_barrier")
    for p in range(4):
        for item in range(8):
            xl, ks, e = item >> 2, (item >> 1) & 1, item & 1
            A(f"ds_read_b128 {vr(128 + (p*8+item)*4, 4)}, v{13 + p//2} offset:{(p%2)*32768 + xl*4096 + ks*2048 + e*256}")
    for i in range(16):
        A(f"v_lshlrev_b32 v{48+2*i}, 16, v{32+i}\nv_and_b32 v{48+2*i+1}, 0xffff0000, v{32+i}")
    for p in range(4):
        A(f"s_waitcnt lgkmcnt({min(15, 8*(3-p))})") if p < 3 else A("s_waitcnt lgkmcnt(0)")
        if p == 0: A("s_waitcnt lgkmcnt(15)")
        for i in range(16):
            A(f"v_pk_add_f32 {vr(48+2*i,2)}, {vr(48+2*i,2)}, {vr(128+p*32+2*i,2)}")
    for i in range(16):
        A(f"v_cvt_pk_bf16_f32 v{32+i}, v{48+2*i}, v{48+2*i+1}")
    if out_mode == "xf":
        srd(A, 16, 24, 4 << 20, out_off)
        for xl in range(2):
            for ks in range(2):
                A(f"buffer_store_dwordx4 {vr(32 + (xl*2+ks)*4, 4)}, v{2+ks}, s[16:19], s36 offen offset:{xl*1024}")
    else:
        srd(A, 16, 6, 4 << 20)
        A("v_and_b32 v12, 15, v31\nv_lshlrev_b32 v12, 11, v12\nv_lshrrev_b32 v13, 4, v31\nv_lshl_add_u32 v12, v13, 4, v12\nv_add_u32 v13, 32768, v12")
        A("s_lshl_b32 s29, s27, 3\ns_lshl_b32 s30, s26, 1\ns_add_u32 s29, s29, s30\ns_lshl_b32 s29, s29, 15\ns_lshl_b32 s30, s28, 7\ns_add_u32 s29, s29, s30")
        for xl in range(2):
            for ks in range(2):
                A(f"buffer_store_dwordx4 {vr(32 + (xl*2+ks)*4, 4)}, v{12+xl}, s[16:19], s29 offen offset:{ks*64}")
    if stamps:
        A("s_waitcnt vmcnt(0)")
        A("s_memtime s[46:47]\ns_memrealtime s[48:49]\ns_waitcnt lgkmcnt(0)")
        srd(A, 8, 24, 1 << 20, WS_STAMP)
        A("s_lshl_b32 s29, s2, 2\ns_add_u32 s29, s29, s26\ns_lshl_b32 s29, s29, 5")
        A("v_mov_b32 v8, s40\nv_mov_b32 v9, s42\nv_mov_b32 v10, s44\nv_mov_b32 v11, s46\nv_mov_b32 v12, s48\nv_mov_b32 v13, s50\nv_mov_b32 v14, 0")
        A("s_getreg_b32 s30, hwreg(HW_REG_XCC_ID)\nv_mov_b32 v15, s30")
        A("s_mov_b64 exec, 1")
        A("buffer_store_dwordx4 v[8:11], v14, s[8:11], s29 offen")
        A("buffer_store_dwordx2 v[12:13], v14, s[8:11], s29 offen offset:16")
        A("buffer_store_dword v15, v14, s[8:11], s29 offen offset:24")
    A(f"{name}_end:\ns_endpgm")
    return kernel_desc(name, 256 + WR + 16, 256)

if __name__ == "__main__":
    s = wrap(["; @launch kernel=gemm2_kernel grid=(256,1,1) block=(256,1,1) lds=131072"], [lambda A: gen_gemm2(A, stamps=True)])
    open("g2.s", "w").write(s)
```

```python
from asmlib import *
from gemm1 import WS_XN, WS_H, WS_X1, WS_Y, WS_X2, WS_STAMP, f2u, wrap
from conv import stamp_tail

def round_bf16(A, v, tmp=None):
    A(f"v_cvt_pk_bf16_f32 v{v}, v{v}, v{v}\nv_and_b32 v{v}, 0xffff0000, v{v}")

def gen_ln(A, name, src="q", stamps=False):
    X = 16
    RX = 48
    RY = 64
    Y = 80
    Z = 112
    kernel_begin(A, name)
    A("s_cmp_ge_u32 s2, 256\ns_cbranch_scc1 %s_end" % name)
    A("s_load_dwordx2 s[4:5], s[0:1], 0")
    A("s_load_dwordx2 s[24:25], s[0:1], 96")
    if stamps: A("s_memtime s[40:41]\ns_memrealtime s[50:51]")
    A("v_lshrrev_b32 v1, 6, v0")
    A("v_and_b32 v15, 63, v0")
    A("v_readfirstlane_b32 s26, v1")
    A("v_and_b32 v4, 7, v15\nv_bfe_u32 v5, v15, 3, 2\nv_lshrrev_b32 v6, 5, v15")
    A("v_lshlrev_b32 v2, 12, v6\nv_lshl_add_u32 v2, v5, 8, v2\nv_lshl_add_u32 v2, v4, 4, v2")
    A("s_lshr_b32 s28, s2, 3\ns_lshl_b32 s28, s28, 17\ns_lshl_b32 s29, s26, 15\ns_add_u32 s28, s28, s29")
    A("s_bfe_u32 s29, s2, 0x20001\ns_lshl_b32 s29, s29, 10\ns_add_u32 s28, s28, s29\ns_and_b32 s29, s2, 1\ns_lshl_b32 s29, s29, 7\ns_add_u32 s28, s28, s29")
    A("s_add_u32 s29, s28, 8192\ns_add_u32 s30, s28, 16384\ns_add_u32 s31, s28, 24576")
    if src == "q":
        A("v_lshlrev_b32 v3, 11, v4\nv_lshl_add_u32 v3, v6, 6, v3\nv_lshl_add_u32 v3, v5, 4, v3")
        A("s_lshl_b32 s27, s2, 14\ns_lshl_b32 s33, s26, 9\ns_add_u32 s27, s27, s33")
    A("s_waitcnt lgkmcnt(0)")
    if src == "q":
        srd(A, 8, 4, 4 << 20)
        for i in range(4): A(f"buffer_load_dwordx4 {vr(RX+4*i,4)}, v3, s[8:11], s27 offen offset:{128*i}")
    else:
        srd(A, 8, 24, 4 << 20, WS_X2)
        for i in range(4): A(f"buffer_load_dwordx4 {vr(RX+4*i,4)}, v2, s[8:11], s{28+i} offen")
    srd(A, 12, 24, 4 << 20, WS_Y)
    for i in range(4): A(f"buffer_load_dwordx4 {vr(RY+4*i,4)}, v2, s[12:15], s{28+i} offen")
    srd(A, 16, 24, 4 << 20, WS_X1)
    srd(A, 20, 24, 4 << 20, WS_XN)
    A("v_lshlrev_b32 v8, 3, v4\ns_lshl_b32 s33, s26, 6\nv_add_u32 v7, s33, v8")
    A(f"s_mov_b32 s34, {f2u(1.0/32)}\ns_mov_b32 s35, {f2u(1e-5)}\ns_mov_b32 s36, {f2u(1.0/1024)}")
    def unpack(dst, raw):
        for i in range(16):
            A(f"v_lshlrev_b32 v{dst+2*i}, 16, v{raw+i}\nv_and_b32 v{dst+2*i+1}, 0xffff0000, v{raw+i}")
    def rowstats(rnd):
        lo = rnd*256
        A(f"v_pk_add_f32 v[12:13], {vr(X,2)}, {vr(X+2,2)}")
        A(f"v_pk_add_f32 {vr(Z,2)}, {vr(X+4,2)}, {vr(X+6,2)}")
        for i in range(4, 16, 2):
            A(f"v_pk_add_f32 v[12:13], v[12:13], {vr(X+2*i,2)}")
            A(f"v_pk_add_f32 {vr(Z,2)}, {vr(Z,2)}, {vr(X+2*i+2,2)}")
        A(f"v_pk_add_f32 v[12:13], v[12:13], {vr(Z,2)}")
        A("v_add_f32 v12, v12, v13\nv_mul_f32 v10, s34, v12\nv_mov_b32 v11, v10")
        for i in range(16):
            A(f"v_pk_add_f32 {vr(Z+2*i,2)}, {vr(X+2*i,2)}, v[10:11] neg_lo:[0,1] neg_hi:[0,1]")
        A(f"v_pk_mul_f32 v[12:13], {vr(Z,2)}, {vr(Z,2)}")
        A(f"v_pk_mul_f32 {vr(Z,2)}, {vr(Z+2,2)}, {vr(Z+2,2)}")
        for i in range(2, 16, 2):
            A(f"v_pk_fma_f32 v[12:13], {vr(Z+2*i,2)}, {vr(Z+2*i,2)}, v[12:13]")
            A(f"v_pk_fma_f32 {vr(Z,2)}, {vr(Z+2*i+2,2)}, {vr(Z+2*i+2,2)}, {vr(Z,2)}")
        A(f"v_pk_add_f32 v[12:13], v[12:13], {vr(Z,2)}")
        A("v_add_f32 v11, v12, v13")
        n = 32
        for lvl in range(3):
            if lvl == 0:
                A("s_nop 1")
                A("v_mov_b32_dpp v12, v10 row_ror:8 row_mask:0xf bank_mask:0xf\nv_mov_b32_dpp v13, v11 row_ror:8 row_mask:0xf bank_mask:0xf")
                a_m, b_m, a_M, b_M = 10, 12, 11, 13
            else:
                sw = "v_permlane16_swap_b32" if lvl == 1 else "v_permlane32_swap_b32"
                A("v_mov_b32 v12, v10\nv_mov_b32 v13, v11\ns_nop 1")
                A(f"{sw} v10, v12\n{sw} v11, v13")
                A("s_nop 1")
            A("v_sub_f32 v14, v10, v12\nv_add_f32 v10, v10, v12\nv_add_f32 v11, v11, v13\nv_mul_f32 v14, v14, v14\nv_mul_f32 v10, 0.5, v10")
            A(f"v_mov_b32 v12, {f2u(n/2.0)}\nv_fma_f32 v11, v14, v12, v11")
            n *= 2
        A(f"ds_write_b64 v7, v[10:11] offset:{lo}\ns_waitcnt lgkmcnt(0)\ns_barrier")
        for w in range(4): A(f"ds_read_b64 {vr(Z+2*w,2)}, v8 offset:{lo+64*w}")
        A("s_waitcnt lgkmcnt(0)")
        A(f"v_add_f32 v10, v{Z}, v{Z+2}\nv_add_f32 v12, v{Z+4}, v{Z+6}\nv_add_f32 v10, v10, v12\nv_mul_f32 v10, 0.25, v10" .replace("0.25", hex(f2u(0.25))))
        A(f"v_add_f32 v11, v{Z+1}, v{Z+3}\nv_add_f32 v12, v{Z+5}, v{Z+7}\nv_add_f32 v11, v11, v12")
        for w in range(4): A(f"v_sub_f32 v{Z+2*w}, v{Z+2*w}, v10")
        A(f"v_mul_f32 v12, v{Z}, v{Z}")
        for w in range(1, 4): A(f"v_fma_f32 v12, v{Z+2*w}, v{Z+2*w}, v12")
        A(f"v_mul_f32 v11, s36, v11\nv_mul_f32 v12, {hex(f2u(0.25))}, v12\nv_add_f32 v11, v11, v12")
        round_bf16(A, 10); round_bf16(A, 11)
        A("v_add_f32 v11, s35, v11"); round_bf16(A, 11)
        A("v_sqrt_f32 v11, v11\ns_nop 0"); round_bf16(A, 11)
        A("v_rcp_f32 v12, v11\nv_mov_b32 v11, v10\nv_mov_b32 v13, v12")
        A("s_nop 0\nv_mov_b32 v13, v12")
    A("s_waitcnt vmcnt(4)")
    unpack(X, RX)
    if stamps: A("s_memtime s[42:43]")
    rowstats(0)
    A("s_waitcnt vmcnt(0)")
    unpack(Y, RY)
    for i in range(16):
        z = vr(Z+2*i, 2); x = vr(X+2*i, 2)
        A(f"v_pk_add_f32 {z}, {x}, v[10:11] neg_lo:[0,1] neg_hi:[0,1]")
        A(f"v_pk_mul_f32 {z}, {z}, v[12:13]")
        A(f"v_pk_fma_f32 {x}, {z}, {vr(Y+2*i,2)}, {x}")
    for i in range(16):
        A(f"v_cvt_pk_bf16_f32 v{RX+i}, v{X+2*i}, v{X+2*i+1}")
    for i in range(4): A(f"buffer_store_dwordx4 {vr(RX+4*i,4)}, v2, s[16:19], s{28+i} offen")
    unpack(X, RX)
    rowstats(1)
    if stamps: A("s_memtime s[44:45]")
    for i in range(16):
        z = vr(Z+2*i, 2); x = vr(X+2*i, 2)
        A(f"v_pk_add_f32 {z}, {x}, v[10:11] neg_lo:[0,1] neg_hi:[0,1]")
        A(f"v_pk_mul_f32 {z}, {z}, v[12:13]")
        A(f"v_cvt_pk_bf16_f32 v{RY+i}, v{Z+2*i}, v{Z+2*i+1}")
    for i in range(4): A(f"buffer_store_dwordx4 {vr(RY+4*i,4)}, v2, s[20:23], s{28+i} offen")
    if stamps: stamp_tail(A)
    A(f"{name}_end:\ns_endpgm")
    return kernel_desc(name, 144, 144)
```

```python
import sys
from asmlib import *
from gemm1 import *
from gemm2 import gen_gemm2
from conv import gen_conv, CONV_LDS
from lnk import gen_ln

HEADER = open("interleave_layers__ssm_conv_h3__geglu_ffn__prompt.s.ref").read().split("; Override launch")[0]

def build_all(stamps=False):
    launches = [HEADER.rstrip("\n"),
        f"; @launch kernel=conv_kernel grid=(256,1,1) block=(256,1,1) lds={CONV_LDS}",
        "; @launch kernel=lna_kernel grid=(256,1,1) block=(256,1,1) lds=512",
        "; @launch kernel=gemm1_kernel grid=(256,1,1) block=(256,1,1) lds=114688",
        "; @launch kernel=gemm2a_kernel grid=(256,1,1) block=(256,1,1) lds=131072",
        "; @launch kernel=lnb_kernel grid=(256,1,1) block=(256,1,1) lds=512",
        "; @launch kernel=gemm1_kernel grid=(256,1,1) block=(256,1,1) lds=114688",
        "; @launch kernel=gemm2b_kernel grid=(256,1,1) block=(256,1,1) lds=131072"]
    gens = [lambda A: gen_conv(A, stamps=stamps),
            lambda A: gen_ln(A, "lna_kernel", "q", stamps=stamps),
            lambda A: gen_gemm1(A, stamps=stamps),
            lambda A: gen_gemm2(A, "gemm2a_kernel", out_mode="xf", stamps=stamps),
            lambda A: gen_ln(A, "lnb_kernel", "x2", stamps=stamps),
            lambda A: gen_gemm2(A, "gemm2b_kernel", out_mode="row", stamps=stamps)]
    return wrap(launches, gens)

if __name__ == "__main__":
    open("interleave_layers__ssm_conv_h3__geglu_ffn__prompt.s", "w").write(build_all())
```

```python
from asmlib import *
from gemm1 import WS_XN, WS_H, WS_X1, WS_Y, WS_X2, WS_STAMP, f2u, wrap, stamp_tail

YGS = 16384 + 128
CONV_LDS = 18432 + 4*8320 + 16384

def code_prefetch(A, start, end_, vdst, wave_sgpr, nwaves, tmp=70, lane16="v3"):
    lab = f"pf_{start}_{vdst}"
    A(f"s_getpc_b64 s[{tmp}:{tmp+1}]\n{lab}:")
    A(f"s_add_u32 s{tmp}, s{tmp}, {start}-{lab}\ns_addc_u32 s{tmp+1}, s{tmp+1}, ({start}-{lab})>>63")
    A(f"s_and_b32 s{tmp+1}, s{tmp+1}, 0xffff\ns_mov_b32 s{tmp+2}, {end_}-{start}\ns_mov_b32 s{tmp+3}, 0x20000")
    return tmp

def gen_convv2(A, name="conv_kernel", stamps=False, sf="sc1", wpre="end", l2pre=True, codepf=None):
    UP = 4608; KB = 18432; KW = 8320; OB = 4160; YB = KB + 4*KW
    kernel_begin(A, name)
    A("s_cmp_ge_u32 s2, 256\ns_cbranch_scc1 %s_end" % name)
    A("s_load_dwordx8 s[4:11], s[0:1], 8")
    A("s_load_dwordx2 s[12:13], s[0:1], 40")
    A("s_load_dwordx4 s[84:87], s[0:1], 56")
    A("s_load_dwordx2 s[24:25], s[0:1], 96")
    if stamps: A("s_memtime s[40:41]\ns_memrealtime s[50:51]")
    A("v_lshrrev_b32 v1, 6, v0")
    A("v_and_b32 v15, 63, v0")
    A("v_readfirstlane_b32 s26, v1")
    A("v_lshlrev_b32 v3, 4, v15")
    if codepf:
        A(f"s_getpc_b64 s[72:73]\n{name}_pc:")
        A(f"s_sub_u32 s72, s72, {name}_pc-{codepf[0]}\ns_subb_u32 s73, s73, 0")
        A(f"s_mov_b32 s74, {codepf[1]}-{codepf[0]}\ns_mov_b32 s75, 0x20000\ns_lshl_b32 s28, s26, 10")
        for i in range(codepf[2]):
            A(f"buffer_load_dword v14, v3, s[72:75], s28 offen")
            if i + 1 < codepf[2]: A("s_add_u32 s28, s28, 8192")
    A("s_and_b32 s27, s2, 7\ns_lshl_b32 s27, s27, 5\ns_lshr_b32 s28, s2, 3\ns_add_u32 s27, s27, s28\ns_lshl_b32 s27, s27, 3")
    A("v_and_b32 v0, 255, v0")
    A(f"s_cmp_ge_u32 s26, 4\ns_cbranch_scc1 {name}_loader")
    def wprefetch(wave4):
        A(f"s_lshl_b32 s28, s2, 2\ns_add_u32 s28, s28, {wave4}\ns_and_b32 s29, s28, 511\ns_mul_i32 s29, s29, 14336")
        A("s_cmp_lt_u32 s28, 512\ns_cselect_b32 s76, s84, s86\ns_cselect_b32 s77, s85, s87")
        A(f"s_mov_b32 s78, {1024*7168}\ns_mov_b32 s79, 0x20000")
        A("v_lshlrev_b32 v8, 7, v15")
        A("buffer_load_dword v14, v8, s[76:79], s29 offen\ns_add_u32 s29, s29, 8192")
        A("s_mov_b32 exec_hi, 0xffff\nbuffer_load_dword v14, v8, s[76:79], s29 offen\ns_mov_b32 exec_hi, -1")
    ACC = 16; BR = 48; SA = 64; AD = 88; AV = 92; SK = 48; T = 64
    def areg(m):
        return ar(4*m, 4) if m < 36 else vr(AV + 4*(m-36), 4)
    A("s_waitcnt lgkmcnt(0)")
    A("s_lshr_b32 s28, s27, 1\ns_add_u32 s28, s28, s26\ns_lshl_b32 s28, s28, 12")
    A("s_add_u32 s16, s10, s28\ns_addc_u32 s17, s11, 0\ns_mov_b32 s18, 4096\ns_mov_b32 s19, 0x20000")
    for i in range(4):
        A(f"buffer_load_dwordx4 {vr(SK+4*i,4)}, v3, s[16:19], 0 offen offset:{1024*i}")
    A("s_add_u32 s12, s12, s27\ns_addc_u32 s13, s13, 0\ns_load_dwordx2 s[60:61], s[12:13], 0")
    npre = 0
    if wpre == "start": wprefetch("s26"); npre = 2
    A(f"s_mul_i32 s29, s26, {UP}\ns_mul_i32 s30, s26, {KW}\ns_add_u32 s30, s30, {KB}")
    A("v_mov_b32 v6, 0\nv_mov_b32 v7, 0")
    A("v_lshlrev_b32 v8, 3, v15\nv_add_u32 v9, s29, v8")
    A("ds_write_b64 v9, v[6:7] offset:4096")
    A("v_add_u32 v9, s30, v8\ns_mov_b64 exec, 15")
    A(f"ds_write_b64 v9, v[6:7]\nds_write_b64 v9, v[6:7] offset:{OB}")
    A("s_mov_b64 exec, -1")
    for i in range(32): A(f"v_mov_b32 v{ACC+i}, 0")
    A("v_and_b32 v4, 15, v15\nv_lshrrev_b32 v5, 4, v15")
    A("v_lshlrev_b32 v10, 4, v5\nv_lshlrev_b32 v8, 5, v4\nv_sub_u32 v10, v10, v8\nv_add_u32 v10, 480, v10\nv_add_u32 v10, s29, v10")
    A("v_add_u32 v12, s30, v3")
    A(f"v_and_b32 v8, 1, v4\nv_mul_u32_u24 v8, {OB+2}, v8\nv_lshl_add_u32 v8, v4, 1, v8\nv_lshl_add_u32 v8, v5, 4, v8\nv_add_u32 v13, s30, v8")
    A(f"v_add_u32 v1, {40*64}, v13\nv_add_u32 v2, {56*64}, v13")
    A(f"s_lshl_b32 s29, s26, 12\ns_add_u32 s29, s29, {YB}")
    A("v_lshlrev_b32 v11, 5, v4\nv_lshl_add_u32 v11, v5, 3, v11\nv_add_u32 v11, s29, v11")
    A(f"v_lshlrev_b32 v9, 2, v0\nv_add_u32 v9, {YB}, v9\nv_lshlrev_b32 v6, 4, v0")
    A(f"s_lshr_b32 s29, s27, 3\ns_mul_i32 s29, s29, {YGS}\ns_add_u32 s29, s29, {WS_Y}\ns_add_u32 s32, s24, s29\ns_addc_u32 s33, s25, 0\ns_mov_b32 s34, 16384\ns_mov_b32 s35, 0x20000")
    A("s_mov_b32 s20, 0x05040100\ns_mov_b32 s21, 0x07060302")
    A("s_waitcnt lgkmcnt(0)")
    A("s_cmp_lt_u32 s26, 2\ns_cselect_b32 s62, s60, s61\ns_and_b32 s63, s26, 1\ns_lshl_b32 s63, s63, 4\ns_lshr_b32 s62, s62, s63\ns_and_b32 s62, s62, 0xffff")
    A("v_lshlrev_b32 v8, 3, v5\nv_add_u32 v8, v8, v4\nv_sub_u32 v8, 15, v8")
    A("v_and_b32 v7, 1, v8\nv_lshlrev_b32 v7, 4, v7\nv_lshlrev_b32 v7, v7, s62\nv_ashrrev_i32 v8, 1, v8")
    for j in range(4):
        A(f"v_cmp_eq_u32 vcc, {j}, v8\ns_nop 1\nv_cndmask_b32 v{AD+j}, 0, v7, vcc")
    A(f"s_waitcnt vmcnt({npre})")
    for i in range(4):
        A(f"ds_write_b128 v12, {vr(SK+4*i,4)} offset:{OB+32+1024*i}")
    for i in range(4):
        t = T + 8*(i % 2)
        if i < 3: A(f"v_readfirstlane_b32 s28, v{SK+4*(i+1)}\ns_nop 1\nv_mov_b32 v{t+4}, s28")
        else: A(f"v_mov_b32 v{t+4}, 0")
        A(f"s_nop 1\nv_mov_b32_dpp v{t+4}, v{SK+4*i} wave_shl:1 row_mask:0xf bank_mask:0xf")
        for j in range(4):
            hi = f"v{SK+4*i+j+1}" if j < 3 else f"v{t+4}"
            A(f"v_alignbyte_b32 v{t+j}, {hi}, v{SK+4*i+j}, 2")
        A(f"ds_write_b128 v12, {vr(t,4)} offset:{32+1024*i}")
    A(f"v_lshlrev_b32 v8, 16, v{SK}\ns_mov_b64 exec, 1\nds_write_b32 v12, v8 offset:28\ns_mov_b64 exec, -1")
    A("s_waitcnt lgkmcnt(0)")
    def aread(dst_lo, dst_hi, base, o):
        A(f"ds_read2_b32 {dst_lo}, {base} offset0:{o} offset1:{o+1}")
        A(f"ds_read2_b32 {dst_hi}, {base} offset0:{o+2} offset1:{o+3}")
    for m in range(40):
        if m and m % 15 == 0: A(f"v_add_u32 v13, {15*64}, v13")
        p, b = ("a", 4*m) if m < 36 else ("v", AV + 4*(m-36))
        aread(vr(b,2,p), vr(b+2,2,p), "v13", (m % 15)*16)
    if stamps: A("s_memtime s[42:43]")
    def ystore(c):
        for ch in range(4): A(f"ds_read_b32 v{SA+ch}, v9 offset:{ch*4096 + 1024*c}")
        A("s_waitcnt lgkmcnt(0)")
        o = SA + 4
        A(f"v_perm_b32 v{o}, v{SA+1}, v{SA}, s20\nv_perm_b32 v{o+1}, v{SA+3}, v{SA+2}, s20")
        A(f"v_perm_b32 v{o+2}, v{SA+1}, v{SA}, s21\nv_perm_b32 v{o+3}, v{SA+3}, v{SA+2}, s21")
        A(f"s_mov_b32 s28, {4096*c}")
        A(f"buffer_store_dwordx4 {vr(o,4)}, v6, s[32:35], s28 offen {sf}")
    for c in range(4):
        if wpre == f"b{c}": wprefetch("s26")
        A("s_waitcnt lgkmcnt(0)\ns_barrier")
        def reads(r):
            pb = r % 2
            for e in range(2):
                A(f"ds_read_b128 {vr(BR + 8*pb + 4*e, 4)}, v10 offset:{3584 - 64*(8*(2*c+e) - r)}")
            for m1 in range(5, 8 - 2*c):
                m = 8*m1 + r; d = SA + 12*pb + 4*(m1-5)
                base, o = ("v1", (m-40)*16) if m < 56 else ("v2", (m-56)*16)
                aread(vr(d,2), vr(d+2,2), base, o)
        if c >= 2: ystore(c-1)
        reads(0)
        for r in range(8):
            A("s_waitcnt lgkmcnt(0)")
            pb = r % 2
            seq = []
            for m1 in range(0, 8 - 2*c):
                a = areg(8*m1 + r) if m1 < 5 else vr(SA + 12*pb + 4*(m1-5), 4)
                seq.append((2*c + m1, a, 0))
                if 2*c + 1 + m1 <= 7: seq.append((2*c + 1 + m1, a, 1))
            if r == 0: seq += [(2*c, vr(AD,4), 0), (2*c+1, vr(AD,4), 1)]
            for k, (nb, a, e) in enumerate(seq):
                A(f"v_mfma_f32_16x16x32_bf16 {vr(ACC+4*nb,4)}, {a}, {vr(BR+8*pb+4*e,4)}, {vr(ACC+4*nb,4)}")
                if k == 0 and r < 7: reads(r+1)
        if c == 1: ystore(0)
        A("s_nop 7")
        for nb in (2*c, 2*c+1):
            t = BR + 2*(nb % 2)
            A(f"v_cvt_pk_bf16_f32 v{t}, v{ACC+4*nb}, v{ACC+4*nb+1}\nv_cvt_pk_bf16_f32 v{t+1}, v{ACC+4*nb+2}, v{ACC+4*nb+3}")
            A(f"ds_write_b64 v11, {vr(t,2)} offset:{512*nb}")
    if stamps: A("s_memtime s[44:45]")
    A("s_waitcnt lgkmcnt(0)\ns_barrier")
    ystore(3)
    if stamps: stamp_tail(A)
    A("s_endpgm")
    A(f"{name}_loader:")
    LD = 16; T = 72
    A("s_sub_u32 s26, s26, 4")
    A("v_lshlrev_b32 v2, 12, v0")
    A("v_lshlrev_b32 v11, 2, v0\nv_sub_u32 v11, 1020, v11")
    A("s_waitcnt lgkmcnt(0)")
    A("s_lshl_b32 s28, s27, 2\ns_add_u32 s8, s8, s28\ns_addc_u32 s9, s9, 0\ns_load_dwordx8 s[52:59], s[8:9], 0")
    if l2pre:
        A("s_and_b32 s28, s26, 1\ns_cmp_eq_u32 s28, 0\ns_cselect_b32 s16, s4, s6\ns_cselect_b32 s17, s5, s7")
        A(f"s_mov_b32 s18, {4<<20}\ns_mov_b32 s19, 0x20000")
        A("s_lshr_b32 s28, s2, 3\ns_lshl_b32 s28, s28, 17\ns_and_b32 s29, s2, 7\ns_lshl_b32 s29, s29, 8\ns_add_u32 s28, s28, s29\ns_lshr_b32 s29, s26, 1\ns_lshl_b32 s29, s29, 7\ns_add_u32 s28, s28, s29")
        A("v_lshlrev_b32 v13, 11, v15\nbuffer_load_dword v14, v13, s[16:19], s28 offen")
    A(f"s_add_u32 s32, s4, s27\ns_addc_u32 s33, s5, 0\ns_sub_u32 s34, {4<<20}, s27\ns_mov_b32 s35, 0x20000")
    A(f"s_add_u32 s36, s6, s27\ns_addc_u32 s37, s7, 0\ns_mov_b32 s38, s34\ns_mov_b32 s39, 0x20000")
    def L(c, n): return LD + 14*c + 2*n
    def loads(c):
        A(f"v_add_u32 v4, {(c<<20) - 6144 & 0xffffffff}, v2\nv_add_u32 v5, {(c<<20) - 2048 & 0xffffffff}, v2")
        A(f"s_mov_b32 s28, {c<<20}")
        A("s_mov_b64 exec, 1")
        A(f"buffer_load_dwordx2 {vr(L(c,6),2)}, v4, s[32:35], 0 offen")
        A(f"buffer_load_dwordx2 {vr(L(c,5),2)}, v4, s[32:35], 0 offen offset:2048")
        A(f"buffer_load_dwordx2 {vr(L(c,4),2)}, v5, s[32:35], 0 offen")
        A("s_mov_b64 exec, -1")
        A(f"buffer_load_dwordx2 {vr(L(c,0),2)}, v2, s[32:35], s28 offen")
        A(f"buffer_load_dwordx2 {vr(L(c,1),2)}, v2, s[32:35], s28 offen offset:2048")
        A(f"buffer_load_dwordx2 {vr(L(c,2),2)}, v2, s[36:39], s28 offen")
        A(f"buffer_load_dwordx2 {vr(L(c,3),2)}, v2, s[36:39], s28 offen offset:2048")
    def kvchunk(c, nout):
        if stamps: A(f"s_memtime s[{88+2*(c%2)}:{89+2*(c%2)}]") if c < 2 else None
        A(f"s_waitcnt vmcnt({nout})")
        if stamps: A(f"s_memtime s[{(42,44,46,48)[c]}:{(42,44,46,48)[c]+1}]")
        kA, kB, vA, vB, Bm1, Am1, Bm2 = [L(c, n) for n in range(7)]
        for p in range(2):
            A(f"v_mov_b32_dpp v{Bm1+p}, v{kB+p} wave_shr:1 row_mask:0xf bank_mask:0xf")
            A(f"v_mov_b32_dpp v{Am1+p}, v{kA+p} wave_shr:1 row_mask:0xf bank_mask:0xf")
        def F(row, p): return T + (row*2+p)*2
        rows = {1: Am1, 2: Bm1, 3: kA, 4: kB, 5: vA, 6: vB}
        for row in (3, 4):
            for p in range(2):
                A(f"v_lshlrev_b32 v{F(row,p)}, 16, v{rows[row]+p}\nv_and_b32 v{F(row,p)+1}, 0xffff0000, v{rows[row]+p}")
        for p in range(2):
            A(f"v_mov_b32_dpp v{Bm2+p}, v{Bm1+p} wave_shr:1 row_mask:0xf bank_mask:0xf")
        rows[0] = Bm2
        for row in (1, 2, 5, 6, 0):
            for p in range(2):
                A(f"v_lshlrev_b32 v{F(row,p)}, 16, v{rows[row]+p}\nv_and_b32 v{F(row,p)+1}, 0xffff0000, v{rows[row]+p}")
        R = T + 28
        for i in range(4):
            for r in range(2):
                for ch in range(4):
                    p, e = ch >> 1, ch & 1
                    d = R + (r*2+p)*2 + e; src = F(3 + r - i, p) + e; sc = 64 + (i*2+p)*2 + e
                    if i == 0: A(f"v_mul_f32 v{d}, s{sc}, v{src}")
                    else: A(f"v_fmac_f32 v{d}, s{sc}, v{src}")
        for r in range(2):
            for ch in range(4):
                p, e = ch >> 1, ch & 1
                d = R + (r*2+p)*2 + e
                A(f"v_mul_f32 v{d}, v{d}, v{F(5+r,p)+e}")
        for ch in range(4):
            p, e = ch >> 1, ch & 1
            A(f"v_cvt_pk_bf16_f32 v{T+ch}, v{R + (1*2+p)*2 + e}, v{R + (0*2+p)*2 + e}")
        for ch in range(4):
            A(f"ds_write_b32 v11, v{T+ch} offset:{ch*UP + 3072 - 1024*c}")
        A("s_waitcnt lgkmcnt(0)\ns_barrier")
    loads(0); loads(1)
    A("s_waitcnt lgkmcnt(0)")
    for i in range(4):
        for p in range(2):
            for e in range(2):
                ch = 2*p + e
                src = 52 + 2*ch + (i >> 1)
                dst = 64 + (i*2+p)*2 + e
                A(f"s_lshl_b32 s{dst}, s{src}, 16" if i % 2 == 0 else f"s_and_b32 s{dst}, s{src}, 0xffff0000")
    kvchunk(0, 7)
    loads(2); kvchunk(1, 7)
    loads(3); kvchunk(2, 7)
    if wpre == "mid":
        A("s_mov_b32 s64x, 0" if False else "")
    kvchunk(3, 0)
    if wpre == "end": wprefetch("s26")
    A("s_barrier")
    if wpre == "post": wprefetch("s26")
    if stamps:
        A("s_waitcnt lgkmcnt(0)")
        srd(A, 8, 24, 1 << 20, WS_STAMP)
        A(f"s_lshl_b32 s29, s2, 2\ns_add_u32 s29, s29, s26\ns_lshl_b32 s29, s29, 5\ns_add_u32 s29, s29, {15<<15}")
        A("v_mov_b32 v8, s40\nv_mov_b32 v9, s42\nv_mov_b32 v10, s44\nv_mov_b32 v11, s46\nv_mov_b32 v4, s48\nv_mov_b32 v5, s88\nv_mov_b32 v6, s90\nv_mov_b32 v7, 0\nv_mov_b32 v14, 0")
        A("s_mov_b64 exec, 1")
        A("buffer_store_dwordx4 v[8:11], v14, s[8:11], s29 offen")
        A("buffer_store_dwordx4 v[4:7], v14, s[8:11], s29 offen offset:16")
    A(f"{name}_end:\ns_endpgm")
    return kernel_desc(name, 256, 112)

if __name__ == "__main__":
    s = wrap([f"; @launch kernel=conv_kernel grid=(256,1,1) block=(512,1,1) lds={CONV_LDS}"], [lambda A: gen_convv2(A, stamps=True)])
    open("cv.s", "w").write(s)
```

```python
from asmlib import *
import struct
def f2u(x):
    return struct.unpack("<I", struct.pack("<f", x))[0]

WS_XN = 0
WS_H = 4 << 20
WS_X1 = 20 << 20
WS_Y = 100 << 20
WS_X2 = 28 << 20
WS_STAMP = 120 << 20

def stamp_tail(A, wsreg=24, wave="s26"):
    A("s_waitcnt vmcnt(0)")
    A("s_memtime s[46:47]\ns_memrealtime s[48:49]\ns_load_dword s30, s[0:1], 88\ns_waitcnt lgkmcnt(0)")
    srd(A, 8, wsreg, 1 << 20, WS_STAMP)
    A("s_bfe_u32 s30, s30, 0x40009\ns_lshl_b32 s30, s30, 15")
    A(f"s_lshl_b32 s29, s2, 2\ns_add_u32 s29, s29, {wave}\ns_lshl_b32 s29, s29, 5\ns_add_u32 s29, s29, s30")
    A("v_mov_b32 v8, s40\nv_mov_b32 v9, s42\nv_mov_b32 v10, s44\nv_mov_b32 v11, s46\nv_mov_b32 v12, s48\nv_mov_b32 v13, s50\nv_mov_b32 v14, 0")
    A("s_mov_b64 exec, 1")
    A("buffer_store_dwordx4 v[8:11], v14, s[8:11], s29 offen")
    A("buffer_store_dwordx2 v[12:13], v14, s[8:11], s29 offen offset:16")

def gen_gemm1(A, name="gemm1_kernel", D=4, stamps=False, xpos=(1,3,5,7), dpos0=(9,11,13), dpos1=(8,9,11,13),
              no_dma=False, no_x=False, no_bar=False, no_tr=False, barpos=1, sf=''):
    ACC = 32
    def acc(n, x): return ACC + (n*4 + x)*4
    XR = 0
    WR = 64
    R = 8
    SLOT = 28672
    kernel_begin(A, name)
    A("s_cmp_ge_u32 s2, 256\ns_cbranch_scc1 %s_end" % name)
    A("s_load_dwordx4 s[4:7], s[0:1], 56")
    A("s_load_dwordx2 s[24:25], s[0:1], 96")
    if stamps: A("s_memtime s[40:41]\ns_memrealtime s[50:51]")
    A("v_lshrrev_b32 v1, 6, v0")
    A("v_and_b32 v31, 63, v0")
    A("v_readfirstlane_b32 s26, v1")
    A("s_and_b32 s27, s2, 1\ns_lshl_b32 s27, s27, 2\ns_lshr_b32 s28, s2, 3\ns_and_b32 s29, s28, 3\ns_add_u32 s27, s27, s29")
    A("s_bfe_u32 s29, s2, 0x20001\ns_lshl_b32 s29, s29, 3\ns_lshr_b32 s28, s28, 2\ns_add_u32 s28, s28, s29")
    A("s_movk_i32 s30, 4682")
    A("s_movk_i32 s31, 7168")
    for i in range(7):
        v = 4 + i
        A(f"v_add_u32 v12, {64*i}, v31")
        A("v_mul_u32_u24 v13, s30, v12\nv_lshrrev_b32 v13, 16, v13")
        A("v_mul_u32_u24 v14, 14, v13\nv_sub_u32 v14, v12, v14")
        A("v_bfe_u32 v15, v13, 2, 2\nv_lshlrev_b32 v15, 3, v15\nv_lshrrev_b32 v16, 4, v13\nv_lshl_add_u32 v15, v16, 2, v15\nv_and_b32 v16, 3, v13\nv_add_u32 v15, v15, v16")
        A(f"v_mul_u32_u24 v15, s31, v15\nv_lshl_add_u32 v{v}, v14, 4, v15")
        if (i % 4): A(f"v_subrev_u32 v{v}, {1024*(i%4)}, v{v}")
    A("v_lshrrev_b32 v12, 2, v31\nv_mul_u32_u24 v12, 224, v12\nv_and_b32 v13, 3, v31\nv_lshl_add_u32 v1, v13, 3, v12")
    A(f"v_add_u32 v2, {2*SLOT}, v1")
    A("v_lshlrev_b32 v3, 4, v31")
    A("s_waitcnt lgkmcnt(0)")
    A("s_lshl_b32 s29, s27, 2\ns_add_u32 s29, s29, s26\ns_lshl_b32 s29, s29, 17")
    A(f"s_add_u32 s8, s24, s29\ns_addc_u32 s9, s25, 0\ns_mov_b32 s10, 131072\ns_mov_b32 s11, 0x20000")
    A("s_and_b32 s29, s26, 1\ns_cmp_eq_u32 s29, 0\ns_cselect_b32 s12, s4, s6\ns_cselect_b32 s13, s5, s7")
    A("s_mul_i32 s30, s28, 224\ns_add_u32 s12, s12, s30\ns_addc_u32 s13, s13, 0")
    A(f"s_sub_u32 s14, {1024*7168}, s30\ns_mov_b32 s15, 0x20000")
    srd(A, 16, 24, 2048*3584*2, WS_H)
    A(f"s_lshr_b32 s30, s26, 1\ns_mul_i32 s21, s30, {32*7168}\ns_mul_i32 s22, s30, 14336\ns_mul_i32 s29, s29, 7168\ns_add_u32 s22, s22, s29")
    A("s_mov_b32 s20, 0")
    vm = VmTrack()
    def xload(t, x, emit=True):
        if no_x and t >= 3: return
        if emit:
            A(f"buffer_load_dwordx4 {ar(XR + (t%4)*16 + x*4, 4)}, v3, s[8:11], s20 offen offset:{x*1024}")
            if x == 3: A("s_add_u32 s20, s20, 4096")
        vm.issue(("X", t))
    def dma(s, i, emit=True, m0expr=None):
        if no_dma and s >= 3: return
        if emit:
            if i % 4 == 0:
                A(m0expr(i))
                A("s_nop 0")
            A(f"buffer_load_dwordx4 v{4+i}, s[12:15], s21 offen offset:{(i%4)*1024} lds")
            if i == 6: A(f"s_add_u32 s21, s21, {64*7168}")
        vm.issue(("W", s))
    for x in range(4): xload(0, x)
    for i in range(7): dma(0, i, m0expr=lambda i: f"s_add_u32 m0, s22, {0*SLOT + i*1024}")
    for x in range(4): xload(1, x)
    for i in range(7): dma(1, i, m0expr=lambda i: f"s_add_u32 m0, s22, {1*SLOT + i*1024}")
    for x in range(4): xload(2, x)
    for i in range(7): dma(2, i, m0expr=lambda i: f"s_add_u32 m0, s22, {2*SLOT + i*1024}")
    A(f"s_add_u32 s23, s22, {3*SLOT}\ns_mov_b32 s32, s22")
    A(f"s_lshl_b32 s33, s22, 1\ns_add_u32 s34, s33, {2*SLOT}\ns_add_u32 s33, s33, {4*SLOT}")
    for i in range(ACC, 256): A(f"v_mov_b32 v{i}, 0")
    vm.wait("pro", [("W", 0)])
    A(f"s_waitcnt vmcnt({vm.need['pro']})")
    A("s_barrier")
    def trread(q, half):
        base = "v1" if q < 56 else "v2"
        qq = q % 56
        sp, st, n = qq // 28, (qq // 14) % 2, qq % 14
        off = sp*SLOT + st*14336 + (n & 1)*7168 + (n >> 1)*32 + half*3584
        A(f"ds_read_b64_tr_b16 {ar(WR + (q % R)*4 + half*2, 2)}, {base} offset:{off}")
    for q in range(D):
        trread(q, 0); trread(q, 1)
    A("s_mov_b32 s35, 8")
    if stamps: A("s_memtime s[42:43]")
    def body(it, emit):
        for sp in range(2):
            s = it*2 + sp
            for st in range(2):
                t = s*2 + st
                dlist = list(dpos0) if st == 0 else list(dpos1)
                dbase = 0 if st == 0 else len(dpos0)
                for n in range(14):
                    q = (sp*2 + st)*14 + n
                    w = []
                    if n == 0:
                        site = ("x", sp, st); vm.wait(site, [("X", t)])
                        if emit and not no_x: w.append(f"vmcnt({vm.need[site]})")
                    if st == 0 and n == barpos:
                        site = ("b", sp); vm.wait(site, [("W", s+1)])
                        if emit and not no_dma: w.append(f"vmcnt({vm.need[site]})")
                    if emit:
                        if not no_tr: w.append(f"lgkmcnt({2*(D-1)})")
                        if w: A("s_waitcnt " + " ".join(w))
                        if st == 0 and n == barpos and not no_bar: A("s_barrier")
                    for x in range(4):
                        if emit:
                            A(f"v_mfma_f32_16x16x32_bf16 {vr(acc(n,x),4)}, {ar(WR+(q%R)*4,4)}, {ar(XR+(t%4)*16+x*4,4)}, {vr(acc(n,x),4)}")
                            if x < 2 and not no_tr: trread(q + D, x)
                        if x == 2:
                            if n in xpos: xload(t+3, xpos.index(n), emit)
                            if n in dlist:
                                i = dbase + dlist.index(n)
                                sb = "s23" if sp == 0 else "s32"
                                dma(s+3, i, emit, m0expr=lambda i: f"s_add_u32 m0, {sb}, {i*1024}")
        if emit:
            A("v_swap_b32 v1, v2")
            A("s_sub_u32 s23, s33, s23\ns_sub_u32 s32, s34, s32")
    for it in range(8): body(it, False)
    A(f".p2align 6\n{name}_loop:")
    body(0, True)
    A(f"s_sub_u32 s35, s35, 1\ns_cmp_lg_u32 s35, 0\ns_cbranch_scc1 {name}_loop")
    if stamps: A("s_memtime s[44:45]")
    c0 = -2.0 * 1.4426950408889634 * 0.7978845608028654
    c1 = c0 * 0.044715
    A(f"s_mov_b32 s36, {f2u(c1)}\ns_mov_b32 s37, {f2u(c1)}")
    A(f"v_mov_b32 v4, {f2u(c0)}\nv_mov_b32 v5, {f2u(c0)}")
    A(f"s_lshl_b32 s29, s27, 1\ns_lshr_b32 s30, s26, 1\ns_add_u32 s29, s29, s30\ns_mul_i32 s29, s29, {112*8192}")
    A("s_and_b32 s30, s26, 1\ns_lshl_b32 s30, s30, 12\ns_add_u32 s29, s29, s30")
    A("s_mul_i32 s28, s28, 7")
    A("s_nop 4")
    for j in range(7):
        A(f"s_add_u32 s30, s28, {j}\ns_lshr_b32 s31, s30, 1\ns_lshl_b32 s31, s31, 13\ns_and_b32 s30, s30, 1\ns_lshl_b32 s30, s30, 3\ns_add_u32 s31, s31, s30\ns_add_u32 s31, s31, s29")
        for x in range(4):
            g = acc(2*j, x); u = acc(2*j+1, x)
            T = 8 + (x % 2)*12
            A(f"v_pk_mul_f32 {vr(T,2)}, {vr(g,2)}, {vr(g,2)}")
            A(f"v_pk_mul_f32 {vr(T+2,2)}, {vr(g+2,2)}, {vr(g+2,2)}")
            A(f"v_pk_fma_f32 {vr(T,2)}, {vr(T,2)}, s[36:37], v[4:5]")
            A(f"v_pk_fma_f32 {vr(T+2,2)}, {vr(T+2,2)}, s[36:37], v[4:5]")
            A(f"v_pk_mul_f32 {vr(T,2)}, {vr(T,2)}, {vr(g,2)}")
            A(f"v_pk_mul_f32 {vr(T+2,2)}, {vr(T+2,2)}, {vr(g+2,2)}")
            for e in range(4): A(f"v_exp_f32 v{T+e}, v{T+e}")
            A(f"v_pk_mul_f32 {vr(T+4,2)}, {vr(g,2)}, {vr(u,2)}")
            A(f"v_pk_add_f32 {vr(T,2)}, {vr(T,2)}, 1.0 op_sel_hi:[1,0]")
            A(f"v_pk_add_f32 {vr(T+2,2)}, {vr(T+2,2)}, 1.0 op_sel_hi:[1,0]")
            for e in range(4): A(f"v_rcp_f32 v{T+e}, v{T+e}")
            A(f"v_pk_mul_f32 {vr(T+6,2)}, {vr(g+2,2)}, {vr(u+2,2)}")
            A(f"v_pk_mul_f32 {vr(T+4,2)}, {vr(T+4,2)}, {vr(T,2)}")
            A(f"v_pk_mul_f32 {vr(T+6,2)}, {vr(T+6,2)}, {vr(T+2,2)}")
            A(f"v_cvt_pk_bf16_f32 v{T+8}, v{T+4}, v{T+5}")
            A(f"v_cvt_pk_bf16_f32 v{T+9}, v{T+6}, v{T+7}")
            A(f"buffer_store_dwordx2 {vr(T+8,2)}, v3, s[16:19], s31 offen offset:{x*1024} {sf}")
    if stamps: stamp_tail(A)
    A(f"{name}_end:\ns_endpgm")
    return kernel_desc(name, 352, 256)

def wrap(launches, gens):
    A = Asm()
    for l in launches: A(l)
    A('.amdgcn_target "amdgcn-amd-amdhsa--gfx950"\n.text')
    descs = [g(A) for g in gens]
    A('.section .rodata,"a"')
    for d in descs: A(".p2align 6\n" + d)
    return A.text()

if __name__ == "__main__":
    s = wrap(["; @launch kernel=gemm1_kernel grid=(256,1,1) block=(256,1,1) lds=114688"], [lambda A: gen_gemm1(A, stamps=True)])
    open("g1.s", "w").write(s)
```

```python
from asmlib import *
from gemm1 import WS_XN, WS_H, WS_X1, WS_Y, WS_X2, WS_STAMP, f2u, wrap, stamp_tail
WS_WDP = 32 << 20
G1_LDS = 114688 + 32768

def gen_gemm1v3(A, names=("gemm1a_kernel", "gemm1b_kernel"), LAX=4, stamps=False, sf="sc1",
                wpos=(0,2,4,6,8,10,12), xpos=(15,17,19,20,22,24,25,27), barpos=14, slots_pat=("V","V","T","A"), stamp_mid=False,
                instream=True, wait2=False, late3=True, LAW=2, E=4, ppos=13):
    D = 4
    ACC = 32
    def acc(n, x): return ACC + (n*4 + x)*4
    XR = 0; NX = 8
    WR = 128; R = 8
    SLOT = 28672
    PK = 4*SLOT
    name = names[0]
    kernel_begin(A, names[1])
    A(f"s_mov_b32 s60, 0\ns_branch {name}_body")
    kernel_begin(A, names[0])
    A("s_mov_b32 s60, 1")
    A(f"{name}_body:")
    A("s_cmp_ge_u32 s2, 256\ns_cbranch_scc1 %s_end" % name)
    A("s_load_dwordx4 s[4:7], s[0:1], 56")
    A("s_load_dwordx2 s[24:25], s[0:1], 96")
    A("s_load_dwordx2 s[52:53], s[0:1], 72")
    if stamps: A("s_memtime s[40:41]\ns_memrealtime s[50:51]")
    A("v_lshrrev_b32 v1, 6, v0")
    A("v_and_b32 v31, 63, v0")
    A("v_readfirstlane_b32 s26, v1")
    A("s_and_b32 s27, s2, 1\ns_lshl_b32 s27, s27, 2\ns_lshr_b32 s28, s2, 3\ns_and_b32 s29, s28, 3\ns_add_u32 s27, s27, s29")
    A("s_bfe_u32 s29, s2, 0x20001\ns_lshl_b32 s29, s29, 3\ns_lshr_b32 s28, s28, 2\ns_add_u32 s28, s28, s29")
    A("v_lshlrev_b32 v3, 4, v31")
    A("s_movk_i32 s30, 4682\ns_movk_i32 s31, 7168")
    A("s_and_b32 s33, s28, 1\ns_lshl_b32 s33, s33, 1")
    for i in range(7):
        v = 4 + i
        A(f"v_add_u32 v12, {64*i}, v31")
        A("v_mul_u32_u24 v13, s30, v12\nv_lshrrev_b32 v13, 16, v13")
        A("v_mul_u32_u24 v14, 14, v13\nv_sub_u32 v14, v12, v14")
        A("v_add_u32 v14, s33, v14\nv_subrev_u32 v16, 14, v14\nv_min_u32 v14, v14, v16")
        A("v_bfe_u32 v15, v13, 2, 2\nv_lshlrev_b32 v15, 3, v15\nv_lshrrev_b32 v16, 4, v13\nv_lshl_add_u32 v15, v16, 2, v15\nv_and_b32 v16, 3, v13\nv_add_u32 v15, v15, v16")
        A(f"v_mul_u32_u24 v15, s31, v15\nv_lshl_add_u32 v{v}, v14, 4, v15")
        if (i % 4): A(f"v_subrev_u32 v{v}, {1024*(i%4)}, v{v}")
    A("v_lshrrev_b32 v12, 2, v31\nv_mul_u32_u24 v12, 224, v12\nv_and_b32 v13, 3, v31\nv_lshl_add_u32 v1, v13, 3, v12")
    A(f"v_add_u32 v2, {2*SLOT}, v1")
    A(f"s_lshr_b32 s30, s26, 1\ns_and_b32 s29, s26, 1\ns_mul_i32 s21, s30, {32*7168}\ns_mul_i32 s22, s30, 14336\ns_mul_i32 s31, s29, 7168\ns_add_u32 s22, s22, s31")
    A("s_mov_b32 s20, 0")
    if E:
        assert E == 4
        A("s_lshr_b32 s61, s2, 3\ns_lshr_b32 s62, s61, 2\ns_add_u32 s61, s61, s62\ns_mul_i32 s61, s61, s60")
        for r in range(4):
            A(f"s_add_u32 s62, s61, {r}\ns_and_b32 s62, s62, 3\ns_lshl_b32 s{76+r}, s62, 13\ns_mul_i32 s62, s62, {64*7168}\ns_add_u32 s{64+r}, s62, s21")
        A("s_mov_b32 s68, 0\ns_mov_b32 s69, 0\ns_mov_b32 s21, s64\ns_mov_b32 s20, s76")
    A("s_lshl_b32 s34, s27, 2\ns_add_u32 s34, s34, s26\ns_lshl_b32 s34, s34, 17")
    A("s_mul_i32 s30, s28, 224")
    A("s_waitcnt lgkmcnt(0)")
    A(f"s_add_u32 s8, s24, s34\ns_addc_u32 s9, s25, 0\ns_mov_b32 s10, 131072\ns_mov_b32 s11, 0x20000")
    A("s_cmp_eq_u32 s29, 0\ns_cselect_b32 s12, s4, s6\ns_cselect_b32 s13, s5, s7")
    A("s_add_u32 s12, s12, s30\ns_addc_u32 s13, s13, 0")
    A(f"s_sub_u32 s14, {1024*7168}, s30\ns_mov_b32 s15, 0x20000")
    vm = VmTrack()
    vt = VmTrack()
    def xload(t, x, emit=True):
        if emit:
            A(f"buffer_load_dwordx4 {ar(XR + (t%NX)*16 + x*4, 4)}, v3, s[8:11], s20 offen offset:{x*1024}")
            if x == 3:
                if E and t % 2 == 1:
                    r = ((t+1)//2) % 4
                    if r == 0: A("s_add_u32 s69, s69, 32768")
                    A(f"s_add_u32 s20, s69, s{76+r}")
                else: A("s_add_u32 s20, s20, 4096")
        else:
            vm.issue(("X", t)); vt.issue(("X", t))
    def dma(s, i, emit=True, opt=False):
        if emit:
            if i % 4 == 0:
                A(f"s_add_u32 m0, s22, {(s%4)*SLOT + i*1024}")
                A("s_nop 0")
            A(f"buffer_load_dwordx4 v{4+i}, s[12:15], s21 offen offset:{(i%4)*1024} lds")
            if i == 6:
                if E:
                    r = (s+1) % 4
                    if r == 0: A(f"s_add_u32 s68, s68, {4*64*7168}")
                    A(f"s_add_u32 s21, s68, s{64+r}")
                else: A(f"s_add_u32 s21, s21, {64*7168}")
        else:
            if not opt: vm.issue(("W", s))
            vt.issue(("W", s))
    def both(fn, *a):
        fn(*a, True); fn(*a, False)
    for i in range(7): both(dma, 0, i)
    for x in range(4): both(xload, 0, x)
    for x in range(4): both(xload, 1, x)
    srd(A, 16, 24, 2048*3584*2, WS_H)
    c0 = -2.0 * 1.4426950408889634 * 0.7978845608028654
    c1 = c0 * 0.044715
    A(f"s_mov_b32 s36, {f2u(c1)}\ns_mov_b32 s37, {f2u(c1)}")
    A(f"s_lshl_b32 s29, s27, 1\ns_lshr_b32 s30, s26, 1\ns_add_u32 s29, s29, s30\ns_mul_i32 s29, s29, {112*8192}")
    A("s_and_b32 s30, s26, 1\ns_lshl_b32 s30, s30, 12\ns_add_u32 s29, s29, s30")
    A("s_mul_i32 s30, s28, 7\ns_and_b32 s31, s28, 1\ns_add_u32 s30, s30, s31\ns_lshl_b32 s30, s30, 12\ns_add_u32 s38, s29, s30")
    A("s_lshr_b32 s30, s28, 1\ns_mul_i32 s30, s30, 7\ns_add_u32 s30, s30, 3\ns_lshl_b32 s30, s30, 13\ns_lshl_b32 s31, s31, 9\ns_add_u32 s39, s29, s30\ns_add_u32 s39, s39, s31")
    A("s_add_u32 s61, s38, 8192\ns_add_u32 s62, s38, 16384")
    A(f"s_lshr_b32 s30, s2, 4\ns_mul_i32 s30, s30, {224*2048}\ns_and_b32 s31, s2, 15\ns_lshl_b32 s31, s31, 7\ns_add_u32 s30, s30, s31\ns_lshl_b32 s31, s26, 14\ns_add_u32 s30, s30, s31")
    A(f"s_add_u32 s56, s52, s30\ns_addc_u32 s57, s53, 0\ns_mul_i32 s58, s60, {6*65536 + 8*2048 - 15*128}\ns_mov_b32 s59, 0x20000")
    A(f"s_mov_b32 s70, 0\ns_lshl_b32 s71, s26, 10\ns_add_u32 s71, s71, {PK}\ns_add_u32 s72, s71, {7*4096}")
    A("v_lshrrev_b32 v12, 3, v31\nv_bfe_u32 v13, v31, 1, 2\nv_bfe_u32 v14, v31, 4, 2\nv_xor_b32 v13, v13, v14")
    A("v_and_b32 v14, 1, v31\nv_lshl_add_u32 v13, v13, 1, v14\nv_lshlrev_b32 v13, 4, v13\nv_lshl_add_u32 v11, v12, 11, v13")
    A(f"v_mov_b32 v28, {f2u(c0)}\nv_mov_b32 v29, {f2u(c0)}")
    A("v_and_b32 v30, 15, v31\nv_lshlrev_b32 v30, 4, v30\nv_lshrrev_b32 v12, 5, v31\nv_lshl_add_u32 v30, v12, 8, v30")
    def trread(q, half, s, st, n):
        slot = s % 4
        base = "v1" if slot < 2 else "v2"
        off = (slot % 2)*SLOT + st*14336 + (n & 1)*7168 + (n >> 1)*32 + half*3584
        A(f"ds_read_b64_tr_b16 {ar(WR + (q % R)*4 + half*2, 2)}, {base} offset:{off}")
    frags = [(s, st, n) for s in range(13) for st in range(2) for n in range(14)]
    NQ0 = len(frags)
    def pf(j, sss): return [(13 + ss//2, ss % 2, 2*j + m) for ss in sss for m in range(2)]
    if late3:
        frags += pf(0, [0]) + pf(1, [0]) + pf(0, [1,2,3]) + pf(1, [1,2,3]) + pf(2, [0,1,2,3]) + pf(0, [4,5]) + pf(1, [4,5]) + pf(2, [4,5])
        for j in range(3, 7): frags += pf(j, range(6))
    else:
        frags += pf(0, [0]) + pf(1, [0]) + pf(0, [1,2,3]) + pf(1, [1,2,3]) + pf(0, [4,5]) + pf(1, [4,5])
        for j in range(2, 7): frags += pf(j, range(6))
    vm.wait("pro", [("W", 0)])
    A(f"s_waitcnt vmcnt({vm.need['pro']})")
    A("s_barrier")
    for q in range(D):
        for half in range(2): trread(q, half, *frags[q])
    if stamps: A("s_memtime s[42:43]")
    def pack_dma(emit):
        if emit:
            A("s_min_u32 m0, s71, s72\ns_add_u32 s71, s71, 4096")
            A("buffer_load_dwordx4 v11, s[56:59], s70 offen lds\ns_add_u32 s70, s70, 65536")
        else:
            vm.issue("P"); vt.issue("P")
    def stage(s, emit, key, extra=None, bp=barpos):
        for st in range(2):
            t = s*2 + st
            for n in range(14):
                q = t*14 + n
                w = []
                if n == 0:
                    site = ("x", key, st)
                    if not emit: vm.wait(site, [("X", t)])
                    else: w.append(vm.need[site])
                isbar = (st*14 + n == bp)
                if isbar:
                    site = ("b", key)
                    if not emit: vm.wait(site, [("W", s+1)])
                    else: w.append(vm.need[site])
                if emit:
                    ww = [f"vmcnt({min(w)})"] if w else []
                    if not wait2: ww.append(f"lgkmcnt({2*(D-1)})")
                    elif n % 2 == 0: ww.append(f"lgkmcnt({2*(D-2)})")
                    if ww: A("s_waitcnt " + " ".join(ww))
                    if isbar: A("s_barrier")
                for x in range(4):
                    if emit:
                        c = "0" if t == 0 else vr(acc(n,x),4)
                        A(f"v_mfma_f32_16x16x32_bf16 {vr(acc(n,x),4)}, {ar(WR+(q%R)*4,4)}, {ar(XR+(t%NX)*16+x*4,4)}, {c}")
                        if x < 2: trread(q + D, x, *frags[q + D])
                    if extra is not None:
                        if x >= 2:
                            for th in extra.get((st*14 + n, x), []): th(emit)
                    elif x == 2:
                        pos = st*14 + n
                        if pos in xpos:
                            k = xpos.index(pos); xload(2*s + LAX + k//4, k % 4, emit)
                        if pos in wpos: dma(s+LAW, wpos.index(pos), emit)
                        if pos == ppos: pack_dma(emit)
    seq = [(dma, 1, i) for i in range(7)]
    xs = list(range(2, 2 + LAX))
    def xl(t): return [(xload, t, x) for x in range(4)]
    seq += xl(xs.pop(0))
    if xs: seq += xl(xs.pop(0))
    seq += [(dma, 2, i) for i in range(7)]
    while xs: seq += xl(xs.pop(0))
    for s2 in range(3, LAW + 1): seq += [(dma, s2, i) for i in range(7)]
    slots = [(n, x) for n in range(28) for x in (2, 3)]
    extra = {}
    for k, (fn, a, b) in enumerate(seq):
        sl = slots[min(len(slots)-1, k * len(slots) // max(len(seq), 1))]
        extra.setdefault(sl, []).append(lambda emit, fn=fn, a=a, b=b: fn(a, b, emit))
    bp0 = 28 - D - 1
    stage(0, False, "s0", extra, bp0)
    for it in range(3):
        for sp in range(4): stage(1 + it*4 + sp, False, ("L", sp))
    xt = list(range(26 + LAX, 32))
    tl_loads = []
    while xt and xt[0] < 30: tl_loads += xl(xt.pop(0))
    if LAW == 2: tl_loads += [(dma, 15, i) for i in range(7)]
    while xt: tl_loads += xl(xt.pop(0))
    stage(0, True, "s0", extra, bp0)
    A("s_mov_b32 s35, 3")
    A(f".p2align 6\n{name}_loop:")
    for sp in range(4): stage(9 + sp, True, ("L", sp))
    A(f"s_sub_u32 s35, s35, 1\ns_cmp_lg_u32 s35, 0\ns_cbranch_scc1 {name}_loop")
    if stamps: A("s_memtime s[44:45]")
    def finish(j, x):
        g = acc(2*j, x)
        if j % 2 == 1:
            return [f"buffer_store_dwordx4 {vr(acc(2*(j-1),x),4)}, v3, s[16:19], {('s38','s61','s62')[j//2]} offen offset:{x*1024} {sf}"]
        if j == 6:
            return [f"v_mov_b32 v{g+2}, v{g}\nv_mov_b32 v{g+3}, v{g+1}\ns_nop 1",
                    f"v_permlane16_swap_b32 v{g}, v{g+2}\nv_permlane16_swap_b32 v{g+1}, v{g+3}"]
        return []
    def dst(j, x): return acc(2*j, x) if j % 2 == 0 else acc(2*(j-1), x) + 2
    def epi_pk(j, x, T):
        g = acc(2*j, x); u = acc(2*j+1, x)
        L = []
        L.append(f"v_pk_mul_f32 {vr(T,2)}, {vr(g,2)}, {vr(g,2)}")
        L.append(f"v_pk_mul_f32 {vr(T+2,2)}, {vr(g+2,2)}, {vr(g+2,2)}")
        L.append(f"v_pk_fma_f32 {vr(T,2)}, {vr(T,2)}, s[36:37], v[28:29]")
        L.append(f"v_pk_fma_f32 {vr(T+2,2)}, {vr(T+2,2)}, s[36:37], v[28:29]")
        L.append(f"v_pk_mul_f32 {vr(T,2)}, {vr(T,2)}, {vr(g,2)}")
        L.append(f"v_pk_mul_f32 {vr(T+2,2)}, {vr(T+2,2)}, {vr(g+2,2)}")
        for e in range(4): L.append(f"v_exp_f32 v{T+e}, v{T+e}")
        L.append(f"v_pk_mul_f32 {vr(u,2)}, {vr(g,2)}, {vr(u,2)}")
        L.append(f"v_pk_add_f32 {vr(T,2)}, {vr(T,2)}, 1.0 op_sel_hi:[1,0]")
        L.append(f"v_pk_add_f32 {vr(T+2,2)}, {vr(T+2,2)}, 1.0 op_sel_hi:[1,0]")
        for e in range(4): L.append(f"v_rcp_f32 v{T+e}, v{T+e}")
        L.append(f"v_pk_mul_f32 {vr(u+2,2)}, {vr(g+2,2)}, {vr(u+2,2)}")
        L.append(f"v_pk_mul_f32 {vr(u,2)}, {vr(u,2)}, {vr(T,2)}")
        L.append(f"v_pk_mul_f32 {vr(u+2,2)}, {vr(u+2,2)}, {vr(T+2,2)}")
        d = dst(j, x)
        L.append(f"v_cvt_pk_bf16_f32 v{d}, v{u}, v{u+1}")
        L.append(f"v_cvt_pk_bf16_f32 v{d+1}, v{u+2}, v{u+3}")
        return L + finish(j, x)
    class Grp:
        def __init__(s, j, x, T):
            g = acc(2*j, x); u = acc(2*j+1, x); d = dst(j, x)
            s.j, s.x, s.T = j, x, T
            s.ops = []
            fin = []
            for e in range(4):
                t = T + e; b = len(s.ops)
                s.ops += [["V", f"v_mul_f32 v{t}, v{g+e}, v{g+e}", []],
                          ["V", f"v_fma_f32 v{t}, v{t}, s36, v28", [b]],
                          ["V", f"v_mul_f32 v{t}, v{t}, v{g+e}", [b+1]],
                          ["T", f"v_exp_f32 v{t}, v{t}", [b+2]],
                          ["V", f"v_add_f32 v{t}, 1.0, v{t}", [b+3]],
                          ["T", f"v_rcp_f32 v{t}, v{t}", [b+4]],
                          ["V", f"v_mul_f32 v{u+e}, v{g+e}, v{u+e}", []],
                          ["V", f"v_mul_f32 v{u+e}, v{u+e}, v{t}", [b+5, b+6]]]
                fin.append(b+7)
            gdeps = [i for e in range(4) for i in (8*e+2, 8*e+6)]
            s.ops.append(["V", f"v_cvt_pk_bf16_f32 v{d}, v{u}, v{u+1}", fin[:2] + gdeps])
            s.ops.append(["V", f"v_cvt_pk_bf16_f32 v{d+1}, v{u+2}, v{u+3}", fin[2:] + gdeps])
            n = len(s.ops)
            for f in finish(j, x): s.ops.append(["F", f, [n-2, n-1]])
            s.done = [None]*len(s.ops)
        def ready(s, types, now):
            for i, (ty, tx, dp) in enumerate(s.ops):
                if s.done[i] is None and ty in types and all(s.done[k] is not None and s.done[k] + (2 if s.ops[k][0] == "T" else 1) <= now for k in dp):
                    return i
            return None
        def finished(s): return all(d is not None for d in s.done)
    tail = frags[NQ0:]
    last_pos = {}
    for p, (s_, st_, n_) in enumerate(tail): last_pos[n_ >> 1] = p
    done_at = {p: j for j, p in last_pos.items()}
    first_use = {}
    for p, (s_, st_, n_) in enumerate(tail): first_use.setdefault((s_-13)*2 + st_, p)
    bar14 = first_use[2] - D; bar15 = first_use[4] - D
    pending = []; active = []; temps = [8, 12, 16, 20]
    mi = 0; now = 0; nst = 0
    for p, (s_, st_, n_) in enumerate(tail):
        q = NQ0 + p
        ss = (s_-13)*2 + st_
        w = []; cands = []
        if first_use[ss] == p: vt.wait(("t", ss), [("X", 26 + ss)]); cands.append(vt.need[("t", ss)])
        if p == bar14: vt.wait("tb14", [("W", 14)]); cands.append(vt.need["tb14"])
        if p == bar15: vt.wait("tb15", [("W", 15)]); cands.append(vt.need["tb15"])
        if cands: w.append(f"vmcnt({min(cands)})")
        if p % 2 == 0:
            rem = len(tail) - p - 2
            w.append(f"lgkmcnt({min(2*(D-2), 2*rem)})")
        if w: A("s_waitcnt " + " ".join(w))
        if p == bar14 or p == bar15: A("s_barrier")
        for x in range(4):
            A(f"v_mfma_f32_16x16x32_bf16 {vr(acc(n_,x),4)}, {ar(WR+(q%R)*4,4)}, {ar(XR+((26+ss)%NX)*16+x*4,4)}, {vr(acc(n_,x),4)}")
            mi += 1; now += 1
            if x < 2 and p + D < len(tail): trread(q + D, x, *tail[p + D]); now += 1
            while instream and pending and pending[0][0] <= mi and temps and len(active) < 2:
                _, j, xx = pending.pop(0); active.append(Grp(j, xx, temps.pop(0)))
            if x >= 2 and tl_loads and (x == 2 or p % 2 == 0):
                fn, a_, b_ = tl_loads.pop(0); both(fn, a_, b_)
            pat = slots_pat[x]
            if x == 3 and w and pat in ("V",): pat = ""
            for ch in {"V": ["V"], "T": ["TV"], "A": ["TV"], "3": ["A3"], "": []}[pat]:
                picks = 1
                if ch == "A3":
                    if any(g.ready("T", now) is not None for g in active): ch = "T"
                    else: ch = "V"; picks = 3
                for _ in range(picks):
                    for ty in ch:
                        hit = None
                        for g in active:
                            i = g.ready(ty + ("F" if ty == "V" else ""), now)
                            if i is not None: hit = (g, i); break
                        if hit:
                            g, i = hit; A(g.ops[i][1]); g.done[i] = now; now += 1
                            if "buffer_store" in g.ops[i][1]: nst += 1; vt.issue("S")
                            break
            for g in list(active):
                if g.finished(): active.remove(g); temps.append(g.T)
        if p in done_at:
            j = done_at[p]
            for x in range(4): pending.append((mi + 5 + x, j, x))
    A(f"s_cmp_eq_u32 s60, 0\ns_cbranch_scc1 {name}_nopk2")
    A(f"v_lshrrev_b32 v7, 2, v31\nv_lshlrev_b32 v7, 7, v7\nv_and_b32 v24, 3, v31\nv_lshl_add_u32 v7, v24, 3, v7\nv_add_u32 v7, {PK}, v7")
    A("v_bfe_u32 v25, v31, 3, 2\nv_xor_b32 v25, s26, v25\nv_lshl_add_u32 v4, v25, 5, v7")
    A(f"v_lshrrev_b32 v7, 4, v31\nv_lshlrev_b32 v7, 3, v7\nv_bfe_u32 v25, v31, 2, 2\nv_add_u32 v7, v7, v25")
    for e in range(2):
        A(f"v_add_u32 v26, {4*e}, v7\nv_bfe_u32 v25, v26, 1, 2\nv_xor_b32 v25, s26, v25\nv_lshlrev_b32 v26, 7, v26\nv_lshl_add_u32 v26, v25, 5, v26\nv_lshl_add_u32 v26, v24, 3, v26\nv_add_u32 v{5+e}, {PK + 3*4096}, v26")
    for u in range(7):
        if u == 3:
            A(f"ds_read_b64_tr_b16 {ar(WR+4*u,2)}, v5\nds_read_b64_tr_b16 {ar(WR+4*u+2,2)}, v6")
        else:
            A(f"ds_read_b64_tr_b16 {ar(WR+4*u,2)}, v4 offset:{u*4096}\nds_read_b64_tr_b16 {ar(WR+4*u+2,2)}, v4 offset:{u*4096+2048}")
    srd(A, 56, 24, 3584*2048, WS_WDP)
    A("s_and_b32 s30, s2, 15\ns_mul_i32 s30, s30, 112\ns_lshr_b32 s31, s2, 4\ns_mul_i32 s31, s31, 7\ns_add_u32 s30, s30, s31\ns_lshl_b32 s30, s30, 2\ns_add_u32 s30, s30, s26\ns_lshl_b32 s30, s30, 10")
    for u in range(7):
        A(f"s_waitcnt lgkmcnt({12-2*u})")
        A(f"buffer_store_dwordx4 {ar(WR+4*u,4)}, v3, s[56:59], s30 offen {sf}")
        if u < 6: A("s_add_u32 s30, s30, 4096")
    A(f"{name}_nopk2:")
    A("s_nop 7")
    if stamps and stamp_mid: A("s_memtime s[42:43]")
    now += 8
    while active:
        prog = False
        for g in list(active):
            i = g.ready("VTF", now)
            if i is not None: A(g.ops[i][1]); g.done[i] = now; now += 1; prog = True
            if g.finished(): active.remove(g)
        if not prog: A("s_nop 0"); now += 1
    for k, (_, j, xx) in enumerate(pending):
        for ins in epi_pk(j, xx, 8 + 4*(k % 2)): A(ins)
    A("s_mov_b32 exec_lo, 0xffff\ns_mov_b32 exec_hi, 0xffff")
    for x in range(4):
        A(f"buffer_store_dwordx4 {vr(acc(12,x),4)}, v30, s[16:19], s39 offen offset:{x*1024} {sf}")
    A("s_mov_b64 exec, -1")
    if stamps: stamp_tail(A)
    A(f"{name}_end:\ns_endpgm")
    return kernel_desc(names[0], 256 + 160, 256) + "\n.p2align 6\n" + kernel_desc(names[1], 256 + 160, 256)

if __name__ == "__main__":
    s = wrap([f"; @launch kernel=gemm1a_kernel grid=(256,1,1) block=(256,1,1) lds={G1_LDS}"], [lambda A: gen_gemm1v3(A, stamps=True)])
    open("g1.s", "w").write(s)
```

```python
from asmlib import *
from gemm1 import WS_XN, WS_H, WS_X1, WS_Y, WS_X2, WS_STAMP, f2u, wrap, stamp_tail
from gemm1v3 import WS_WDP
WS_X2B = 40 << 20
G2_LDS = 131072

def gen_gemm2v3(A, name="gemm2_kernel", stamps=False, sf="sc1", D=6, LW=7, barpos=16, hpos=(0,3,6,9,12,15,18,21), xmap=0):
    ACC = 64
    def acc(x, j): return ACC + (x*2 + j)*4
    WRG = 0; NW = 8
    HR = 64; R = 8
    SLOT = 32768
    kernel_begin(A, name)
    A("s_cmp_ge_u32 s2, 256\ns_cbranch_scc1 %s_end" % name)
    A("s_load_dwordx2 s[24:25], s[0:1], 96")
    if stamps: A("s_memtime s[40:41]\ns_memrealtime s[50:51]")
    A("v_lshrrev_b32 v1, 6, v0")
    A("v_and_b32 v31, 63, v0")
    A("v_readfirstlane_b32 s26, v1")
    A("s_and_b32 s33, s2, 1")
    if xmap == 0:
        A("s_bfe_u32 s27, s2, 0x20001\ns_lshl_b32 s27, s27, 2\ns_bfe_u32 s29, s2, 0x20003\ns_add_u32 s27, s27, s29\ns_lshr_b32 s28, s2, 5")
    else:
        A("s_bfe_u32 s27, s2, 0x10002\ns_lshl_b32 s27, s27, 3\ns_bfe_u32 s29, s2, 0x30003\ns_add_u32 s27, s27, s29")
        A("s_bfe_u32 s28, s2, 0x10001\ns_lshl_b32 s28, s28, 2\ns_lshr_b32 s29, s2, 6\ns_add_u32 s28, s28, s29")
    A("v_lshlrev_b32 v2, 4, v31\nv_add_u32 v3, 4096, v2")
    A(f"v_mov_b32 v4, v2\nv_add_u32 v5, {2*SLOT}, v2")
    A(f"s_mul_i32 s30, s33, 56\ns_mul_i32 s29, s27, 112\ns_add_u32 s29, s29, s30\ns_add_u32 s29, s29, s26\ns_lshl_b32 s29, s29, 13\ns_add_u32 s29, s29, {WS_H}")
    A(f"s_lshl_b32 s31, s28, 1\ns_lshr_b32 s32, s26, 1\ns_add_u32 s31, s31, s32\ns_mul_i32 s31, s31, 112\ns_add_u32 s31, s31, s30\ns_lshl_b32 s31, s31, 12")
    A(f"s_and_b32 s32, s26, 1\ns_lshl_b32 s32, s32, 11\ns_add_u32 s31, s31, s32\ns_add_u32 s31, s31, {WS_WDP}")
    A("s_lshl_b32 s22, s26, 13")
    A(f"s_lshl_b32 s34, s26, 13\ns_sub_u32 s34, {56*8192}, s34\ns_sub_u32 s32, {56*4096}, s32")
    A("s_mov_b32 s20, 0\ns_mov_b32 s21, 0")
    A("s_waitcnt lgkmcnt(0)")
    A(f"s_add_u32 s8, s24, s29\ns_addc_u32 s9, s25, 0\ns_mov_b32 s10, s34\ns_mov_b32 s11, 0x20000")
    A(f"s_add_u32 s12, s24, s31\ns_addc_u32 s13, s25, 0\ns_mov_b32 s14, s32\ns_mov_b32 s15, 0x20000")
    vm = VmTrack()
    def wload(t, j, emit):
        if emit:
            A(f"buffer_load_dwordx4 {ar(WRG + (t%NW)*8 + j*4, 4)}, v2, s[12:15], s21 offen offset:{j*1024}")
            if j == 1: A("s_add_u32 s21, s21, 4096")
        else: vm.issue(("W", t))
    def dma(s, i, emit, m0=None):
        if emit:
            if i % 4 == 0:
                A(m0(i)); A("s_nop 0")
            A(f"buffer_load_dwordx4 v{2 + i//4}, s[8:11], s20 offen offset:{(i%4)*1024} lds")
            if i == 7: A("s_add_u32 s20, s20, 32768")
        else: vm.issue(("H", s))
    def both(fn, *a, **k):
        fn(*a, True, **k); fn(*a, False, **k)
    for i in range(8): both(dma, 0, i, m0=lambda i: f"s_add_u32 m0, s22, {i*1024}")
    for t in range(4):
        for j in range(2): both(wload, t, j)
    for i in range(ACC, ACC + 64): A(f"v_mov_b32 v{i}, 0")
    for i in range(8): both(dma, 1, i, m0=lambda i: f"s_add_u32 m0, s22, {SLOT + i*1024}")
    for t in range(4, LW):
        for j in range(2): both(wload, t, j)
    A(f"s_add_u32 s16, s24, {WS_X1}\ns_addc_u32 s17, s25, 0\ns_cmp_eq_u32 s33, 0\ns_cselect_b32 s18, {4<<20}, 0\ns_mov_b32 s19, 0x20000")
    A("v_and_b32 v12, 15, v31\nv_bfe_u32 v13, v31, 4, 1\nv_lshrrev_b32 v14, 5, v31\nv_lshl_add_u32 v13, v13, 1, v14")
    A("v_lshlrev_b32 v8, 4, v12\nv_lshl_add_u32 v8, v13, 8, v8\nv_add_u32 v9, 131072, v8")
    A("s_lshl_b32 s29, s27, 6\ns_lshl_b32 s30, s28, 2\ns_add_u32 s29, s29, s30\ns_add_u32 s29, s29, s26\ns_lshl_b32 s36, s29, 12")
    for x in range(8):
        A(f"buffer_load_dwordx4 {vr(32 + 4*x, 4)}, v{8 + x//4}, s[16:19], s36 offen offset:{(x%4)*1024}")
        vm.issue("R")
    A(f"s_add_u32 s23, s22, {2*SLOT}\ns_lshl_b32 s37, s22, 1\ns_add_u32 s37, s37, {2*SLOT}")
    def hread(q):
        base = "v4" if q < 64 else "v5"
        A(f"ds_read_b128 {ar(HR + (q % R)*4, 4)}, {base} offset:{(q % 64)*1024}")
    vm.wait("pro", [("H", 0)])
    A(f"s_waitcnt vmcnt({vm.need['pro']})\ns_barrier")
    for q in range(D): hread(q)
    A("s_mov_b32 s35, 7")
    if stamps: A("s_memtime s[42:43]")
    def body(it, emit):
        for sp in range(2):
            s = it*2 + sp
            for st in range(4):
                t = s*4 + st
                for x in range(8):
                    pos = st*8 + x; q = sp*32 + pos
                    w = []
                    if x == 0:
                        site = ("w", sp, st)
                        if emit: w.append(vm.need[site])
                        else: vm.wait(site, [("W", t)])
                    if pos == barpos:
                        site = ("b", sp)
                        if emit: w.append(vm.need[site])
                        else: vm.wait(site, [("H", s+1)])
                    if emit:
                        ww = [f"vmcnt({min(w)})"] if w else []
                        if x % 2 == 0: ww.append(f"lgkmcnt({D-2})")
                        if ww: A("s_waitcnt " + " ".join(ww))
                        if pos == barpos: A("s_barrier")
                    for j in range(2):
                        if emit:
                            A(f"v_mfma_f32_16x16x32_bf16 {vr(acc(x,j),4)}, {ar(WRG+(t%NW)*8+j*4,4)}, {ar(HR+(q%R)*4,4)}, {vr(acc(x,j),4)}")
                            if j == 0: hread(q + D)
                        if j == 1:
                            if pos in hpos: dma(s+2, hpos.index(pos), emit, m0=lambda i: f"s_add_u32 m0, s23, {sp*SLOT + i*1024}")
                            if x in (2, 5): wload(t + LW, (2, 5).index(x), emit)
        if emit:
            A("v_swap_b32 v4, v5\ns_sub_u32 s23, s37, s23")
    for it in range(7): body(it, False)
    A(f".p2align 6\n{name}_loop:")
    body(0, True)
    A(f"s_sub_u32 s35, s35, 1\ns_cmp_lg_u32 s35, 0\ns_cbranch_scc1 {name}_loop")
    if stamps: A("s_memtime s[44:45]")
    A(f"s_mul_i32 s29, s33, {WS_X2B - WS_X2}\ns_add_u32 s29, s29, {WS_X2}")
    A(f"s_add_u32 s16, s24, s29\ns_addc_u32 s17, s25, 0\ns_mov_b32 s18, {4<<20}\ns_mov_b32 s19, 0x20000")
    for x in range(8):
        a = acc(x, 0); b = acc(x, 1); r = 32 + 4*x; T = 16 + 8*(x % 2)
        if x == 7: A("s_nop 1")
        for e in range(4): A(f"v_lshlrev_b32 v{T+2*e}, 16, v{r+e}\nv_and_b32 v{T+2*e+1}, 0xffff0000, v{r+e}")
        for e in range(4): A(f"v_permlane16_swap_b32 v{a+e}, v{b+e}")
        for e in range(4): A(f"v_pk_add_f32 {vr(a+2*e,2)}, {vr(a+2*e,2)}, {vr(T+2*e,2)}")
        for e in range(4): A(f"v_cvt_pk_bf16_f32 v{r+e}, v{a+2*e}, v{a+2*e+1}")
        A(f"buffer_store_dwordx4 {vr(r,4)}, v{8 + x//4}, s[16:19], s36 offen offset:{(x%4)*1024} {sf}")
    if stamps: stamp_tail(A)
    A(f"{name}_end:\ns_endpgm")
    return kernel_desc(name, 128 + 96, 128)

if __name__ == "__main__":
    s = wrap([f"; @launch kernel=gemm2_kernel grid=(256,1,1) block=(256,1,1) lds={G2_LDS}"], [lambda A: gen_gemm2v3(A, stamps=True)])
    open("g2.s", "w").write(s)
```

```python
from asmlib import *
from gemm1 import WS_XN, WS_H, WS_X1, WS_Y, WS_X2, WS_STAMP, f2u, wrap, stamp_tail
WS_X2B = 40 << 20

def round_bf16(A, v, tmp=None):
    A(f"v_cvt_pk_bf16_f32 v{v}, v{v}, v{v}\nv_and_b32 v{v}, 0xffff0000, v{v}")

def gen_ln(A, name, src="q", stamps=False, sf=""):
    X = 16
    RX = 48
    RY = 64
    Y = 80
    Z = 112
    kernel_begin(A, name)
    A("s_cmp_ge_u32 s2, 256\ns_cbranch_scc1 %s_end" % name)
    A("s_load_dwordx2 s[4:5], s[0:1], 0")
    A("s_load_dwordx2 s[24:25], s[0:1], 96")
    if stamps: A("s_memtime s[40:41]\ns_memrealtime s[50:51]")
    A("v_lshrrev_b32 v1, 6, v0")
    A("v_and_b32 v15, 63, v0")
    A("v_readfirstlane_b32 s26, v1")
    A("v_and_b32 v4, 7, v15\nv_bfe_u32 v5, v15, 3, 2\nv_lshrrev_b32 v6, 5, v15")
    A("v_lshlrev_b32 v2, 12, v6\nv_lshl_add_u32 v2, v5, 8, v2\nv_lshl_add_u32 v2, v4, 4, v2")
    A("s_lshr_b32 s28, s2, 3\ns_lshl_b32 s28, s28, 17\ns_lshl_b32 s29, s26, 15\ns_add_u32 s28, s28, s29")
    A("s_bfe_u32 s29, s2, 0x20001\ns_lshl_b32 s29, s29, 10\ns_add_u32 s28, s28, s29\ns_and_b32 s29, s2, 1\ns_lshl_b32 s29, s29, 7\ns_add_u32 s28, s28, s29")
    A("s_add_u32 s29, s28, 8192\ns_add_u32 s30, s28, 16384\ns_add_u32 s31, s28, 24576")
    if src == "q":
        A("v_lshlrev_b32 v3, 11, v4\nv_lshl_add_u32 v3, v6, 6, v3\nv_lshl_add_u32 v3, v5, 4, v3")
        A("s_lshl_b32 s27, s2, 14\ns_lshl_b32 s33, s26, 9\ns_add_u32 s27, s27, s33")
    A("s_waitcnt lgkmcnt(0)")
    if src == "q":
        srd(A, 8, 4, 4 << 20)
        for i in range(4): A(f"buffer_load_dwordx4 {vr(RX+4*i,4)}, v3, s[8:11], s27 offen offset:{128*i}")
    else:
        srd(A, 8, 24, 4 << 20, WS_X2)
        for i in range(4): A(f"buffer_load_dwordx4 {vr(RX+4*i,4)}, v2, s[8:11], s{28+i} offen")
        srd(A, 8, 24, 4 << 20, WS_X2B)
        for i in range(4): A(f"buffer_load_dwordx4 {vr(Z+4*i,4)}, v2, s[8:11], s{28+i} offen")
    srd(A, 12, 24, 4 << 20, WS_Y)
    for i in range(4): A(f"buffer_load_dwordx4 {vr(RY+4*i,4)}, v2, s[12:15], s{28+i} offen")
    srd(A, 16, 24, 4 << 20, WS_X1)
    srd(A, 20, 24, 4 << 20, WS_XN)
    A("v_lshlrev_b32 v8, 3, v4\ns_lshl_b32 s33, s26, 6\nv_add_u32 v7, s33, v8")
    A(f"s_mov_b32 s34, {f2u(1.0/32)}\ns_mov_b32 s35, {f2u(1e-5)}\ns_mov_b32 s36, {f2u(1.0/1024)}")
    def unpack(dst, raw):
        for i in range(16):
            A(f"v_lshlrev_b32 v{dst+2*i}, 16, v{raw+i}\nv_and_b32 v{dst+2*i+1}, 0xffff0000, v{raw+i}")
    def rowstats(rnd):
        lo = rnd*256
        A(f"v_pk_add_f32 v[12:13], {vr(X,2)}, {vr(X+2,2)}")
        A(f"v_pk_add_f32 {vr(Z,2)}, {vr(X+4,2)}, {vr(X+6,2)}")
        for i in range(4, 16, 2):
            A(f"v_pk_add_f32 v[12:13], v[12:13], {vr(X+2*i,2)}")
            A(f"v_pk_add_f32 {vr(Z,2)}, {vr(Z,2)}, {vr(X+2*i+2,2)}")
        A(f"v_pk_add_f32 v[12:13], v[12:13], {vr(Z,2)}")
        A("v_add_f32 v12, v12, v13\nv_mul_f32 v10, s34, v12\nv_mov_b32 v11, v10")
        for i in range(16):
            A(f"v_pk_add_f32 {vr(Z+2*i,2)}, {vr(X+2*i,2)}, v[10:11] neg_lo:[0,1] neg_hi:[0,1]")
        A(f"v_pk_mul_f32 v[12:13], {vr(Z,2)}, {vr(Z,2)}")
        A(f"v_pk_mul_f32 {vr(Z,2)}, {vr(Z+2,2)}, {vr(Z+2,2)}")
        for i in range(2, 16, 2):
            A(f"v_pk_fma_f32 v[12:13], {vr(Z+2*i,2)}, {vr(Z+2*i,2)}, v[12:13]")
            A(f"v_pk_fma_f32 {vr(Z,2)}, {vr(Z+2*i+2,2)}, {vr(Z+2*i+2,2)}, {vr(Z,2)}")
        A(f"v_pk_add_f32 v[12:13], v[12:13], {vr(Z,2)}")
        A("v_add_f32 v11, v12, v13")
        n = 32
        for lvl in range(3):
            if lvl == 0:
                A("s_nop 1")
                A("v_mov_b32_dpp v12, v10 row_ror:8 row_mask:0xf bank_mask:0xf\nv_mov_b32_dpp v13, v11 row_ror:8 row_mask:0xf bank_mask:0xf")
                a_m, b_m, a_M, b_M = 10, 12, 11, 13
            else:
                sw = "v_permlane16_swap_b32" if lvl == 1 else "v_permlane32_swap_b32"
                A("v_mov_b32 v12, v10\nv_mov_b32 v13, v11\ns_nop 1")
                A(f"{sw} v10, v12\n{sw} v11, v13")
                A("s_nop 1")
            A("v_sub_f32 v14, v10, v12\nv_add_f32 v10, v10, v12\nv_add_f32 v11, v11, v13\nv_mul_f32 v14, v14, v14\nv_mul_f32 v10, 0.5, v10")
            A(f"v_mov_b32 v12, {f2u(n/2.0)}\nv_fma_f32 v11, v14, v12, v11")
            n *= 2
        A(f"ds_write_b64 v7, v[10:11] offset:{lo}\ns_waitcnt lgkmcnt(0)\ns_barrier")
        for w in range(4): A(f"ds_read_b64 {vr(Z+2*w,2)}, v8 offset:{lo+64*w}")
        A("s_waitcnt lgkmcnt(0)")
        A(f"v_add_f32 v10, v{Z}, v{Z+2}\nv_add_f32 v12, v{Z+4}, v{Z+6}\nv_add_f32 v10, v10, v12\nv_mul_f32 v10, 0.25, v10" .replace("0.25", hex(f2u(0.25))))
        A(f"v_add_f32 v11, v{Z+1}, v{Z+3}\nv_add_f32 v12, v{Z+5}, v{Z+7}\nv_add_f32 v11, v11, v12")
        for w in range(4): A(f"v_sub_f32 v{Z+2*w}, v{Z+2*w}, v10")
        A(f"v_mul_f32 v12, v{Z}, v{Z}")
        for w in range(1, 4): A(f"v_fma_f32 v12, v{Z+2*w}, v{Z+2*w}, v12")
        A(f"v_mul_f32 v11, s36, v11\nv_mul_f32 v12, {hex(f2u(0.25))}, v12\nv_add_f32 v11, v11, v12")
        round_bf16(A, 10); round_bf16(A, 11)
        A("v_add_f32 v11, s35, v11"); round_bf16(A, 11)
        A("v_sqrt_f32 v11, v11\ns_nop 0"); round_bf16(A, 11)
        A("v_rcp_f32 v12, v11\nv_mov_b32 v11, v10\nv_mov_b32 v13, v12")
        A("s_nop 0\nv_mov_b32 v13, v12")
    A("s_waitcnt vmcnt(4)")
    unpack(X, RX)
    if src != "q":
        unpack(Y, Z)
        for i in range(16): A(f"v_pk_add_f32 {vr(X+2*i,2)}, {vr(X+2*i,2)}, {vr(Y+2*i,2)}")
        for i in range(16): A(f"v_cvt_pk_bf16_f32 v{RX+i}, v{X+2*i}, v{X+2*i+1}")
        unpack(X, RX)
    if stamps: A("s_memtime s[42:43]")
    rowstats(0)
    A("s_waitcnt vmcnt(0)")
    unpack(Y, RY)
    for i in range(16):
        z = vr(Z+2*i, 2); x = vr(X+2*i, 2)
        A(f"v_pk_add_f32 {z}, {x}, v[10:11] neg_lo:[0,1] neg_hi:[0,1]")
        A(f"v_pk_mul_f32 {z}, {z}, v[12:13]")
        A(f"v_pk_fma_f32 {x}, {z}, {vr(Y+2*i,2)}, {x}")
    for i in range(16):
        A(f"v_cvt_pk_bf16_f32 v{RX+i}, v{X+2*i}, v{X+2*i+1}")
    for i in range(4): A(f"buffer_store_dwordx4 {vr(RX+4*i,4)}, v2, s[16:19], s{28+i} offen {sf}")
    unpack(X, RX)
    rowstats(1)
    if stamps: A("s_memtime s[44:45]")
    for i in range(16):
        z = vr(Z+2*i, 2); x = vr(X+2*i, 2)
        A(f"v_pk_add_f32 {z}, {x}, v[10:11] neg_lo:[0,1] neg_hi:[0,1]")
        A(f"v_pk_mul_f32 {z}, {z}, v[12:13]")
        A(f"v_cvt_pk_bf16_f32 v{RY+i}, v{Z+2*i}, v{Z+2*i+1}")
    for i in range(4): A(f"buffer_store_dwordx4 {vr(RY+4*i,4)}, v2, s[20:23], s{28+i} offen {sf}")
    if stamps: stamp_tail(A)
    A(f"{name}_end:\ns_endpgm")
    return kernel_desc(name, 144, 144)


def gen_fin(A, name="fin_kernel", stamps=False, sf=""):
    kernel_begin(A, name)
    A("s_cmp_ge_u32 s2, 256\ns_cbranch_scc1 %s_end" % name)
    A("s_load_dwordx2 s[4:5], s[0:1], 80")
    A("s_load_dwordx2 s[24:25], s[0:1], 96")
    if stamps: A("s_memtime s[40:41]\ns_memrealtime s[50:51]\ns_memtime s[42:43]\ns_memtime s[44:45]")
    A("v_lshrrev_b32 v1, 6, v0")
    A("v_and_b32 v15, 63, v0")
    A("v_readfirstlane_b32 s26, v1")
    A("v_and_b32 v4, 7, v15\nv_bfe_u32 v5, v15, 3, 2\nv_lshrrev_b32 v6, 5, v15")
    A("v_lshlrev_b32 v2, 12, v6\nv_lshl_add_u32 v2, v5, 8, v2\nv_lshl_add_u32 v2, v4, 4, v2")
    A("s_lshr_b32 s28, s2, 3\ns_lshl_b32 s28, s28, 17\ns_lshl_b32 s29, s26, 15\ns_add_u32 s28, s28, s29")
    A("s_bfe_u32 s29, s2, 0x20001\ns_lshl_b32 s29, s29, 10\ns_add_u32 s28, s28, s29\ns_and_b32 s29, s2, 1\ns_lshl_b32 s29, s29, 7\ns_add_u32 s28, s28, s29")
    A("s_add_u32 s29, s28, 8192\ns_add_u32 s30, s28, 16384\ns_add_u32 s31, s28, 24576")
    A("v_lshlrev_b32 v3, 11, v4\nv_lshl_add_u32 v3, v6, 6, v3\nv_lshl_add_u32 v3, v5, 4, v3")
    A("s_lshl_b32 s27, s2, 14\ns_lshl_b32 s33, s26, 9\ns_add_u32 s27, s27, s33")
    A("s_waitcnt lgkmcnt(0)")
    srd(A, 8, 24, 4 << 20, WS_X2)
    srd(A, 12, 24, 4 << 20, WS_X2B)
    for i in range(4):
        A(f"buffer_load_dwordx4 {vr(16+4*i,4)}, v2, s[8:11], s{28+i} offen")
        A(f"buffer_load_dwordx4 {vr(32+4*i,4)}, v2, s[12:15], s{28+i} offen")
    srd(A, 16, 4, 4 << 20)
    for i in range(4):
        A(f"s_waitcnt vmcnt({6 - 2*i + i})")
        for e in range(4):
            a = 16+4*i+e; b = 32+4*i+e
            A(f"v_lshlrev_b32 v48, 16, v{a}\nv_and_b32 v49, 0xffff0000, v{a}\nv_lshlrev_b32 v50, 16, v{b}\nv_and_b32 v51, 0xffff0000, v{b}")
            A(f"v_pk_add_f32 v[48:49], v[48:49], v[50:51]\nv_cvt_pk_bf16_f32 v{a}, v48, v49")
        A(f"buffer_store_dwordx4 {vr(16+4*i,4)}, v3, s[16:19], s27 offen offset:{128*i} {sf}")
    if stamps: stamp_tail(A)
    A(f"{name}_end:\ns_endpgm")
    return kernel_desc(name, 56, 56)
```

```python
from asmlib import *
from gemm1 import WS_XN, WS_H, WS_X1, WS_Y, WS_X2, WS_STAMP, f2u, wrap, stamp_tail
WS_X2B = 40 << 20
from convv2 import YGS

def round_bf16(A, v):
    A(f"v_cvt_pk_bf16_f32 v{v}, v{v}, v{v}\nv_and_b32 v{v}, 0xffff0000, v{v}")

def gen_lnv3(A, names=("lna_kernel", "lnb_kernel"), stamps=False, sf="sc1", wrows=256):
    X = 16; RX = 32; RY = 40; Y = 48; RB = 64; Z = 48
    name = names[0]
    kernel_begin(A, names[1])
    A(f"s_mov_b32 s60, 0\ns_branch {name}_body")
    kernel_begin(A, names[0])
    A("s_mov_b32 s60, 1")
    A(f"{name}_body:")
    A("s_cmp_ge_u32 s2, 256\ns_cbranch_scc1 %s_end" % name)
    A("s_load_dwordx2 s[4:5], s[0:1], 0")
    A("s_load_dwordx2 s[24:25], s[0:1], 96")
    A("s_load_dwordx4 s[64:67], s[0:1], 56")
    if stamps: A("s_memtime s[40:41]\ns_memrealtime s[50:51]")
    A("v_lshrrev_b32 v1, 6, v0")
    A("v_and_b32 v15, 63, v0")
    A("v_readfirstlane_b32 s26, v1")
    A("s_lshr_b32 s3, s2, 4\ns_lshl_b32 s3, s3, 3\ns_and_b32 s29, s2, 7\ns_add_u32 s3, s3, s29\ns_lshl_b32 s3, s3, 1\ns_bfe_u32 s29, s2, 0x10003\ns_add_u32 s3, s3, s29")
    A("v_and_b32 v4, 7, v15\nv_bfe_u32 v5, v15, 3, 2\nv_lshrrev_b32 v6, 5, v15")
    A("v_lshlrev_b32 v2, 12, v6\nv_lshl_add_u32 v2, v5, 8, v2\nv_lshl_add_u32 v2, v4, 4, v2")
    A("s_lshr_b32 s28, s3, 3\ns_lshl_b32 s28, s28, 17\ns_lshl_b32 s29, s26, 14\ns_add_u32 s28, s28, s29")
    A("s_bfe_u32 s29, s3, 0x20001\ns_lshl_b32 s29, s29, 10\ns_add_u32 s28, s28, s29\ns_and_b32 s29, s3, 1\ns_lshl_b32 s29, s29, 7\ns_add_u32 s28, s28, s29")
    A("s_add_u32 s29, s28, 8192")
    A("v_lshlrev_b32 v3, 11, v4\nv_lshl_add_u32 v3, v6, 6, v3\nv_lshl_add_u32 v3, v5, 4, v3")
    A("s_lshl_b32 s27, s3, 14\ns_lshl_b32 s33, s26, 8\ns_add_u32 s27, s27, s33")
    A(f"v_lshlrev_b32 v9, 2, v6\nv_add_u32 v9, v9, v5\nv_mul_u32_u24 v9, {2*YGS}, v9\nv_lshl_add_u32 v9, v4, 3, v9\nv_add_u32 v14, {YGS}, v9")
    A(f"s_mul_i32 s37, s26, {32*YGS}\ns_lshl_b32 s33, s3, 6\ns_add_u32 s37, s37, s33\ns_add_u32 s38, s37, {16*YGS}")
    A("s_cmp_eq_u32 s60, 0")
    A("s_waitcnt lgkmcnt(0)")
    A(f"s_cbranch_scc1 {name}_ldb")
    srd(A, 8, 4, 4 << 20)
    for i in range(2): A(f"buffer_load_dwordx4 {vr(RX+4*i,4)}, v3, s[8:11], s27 offen offset:{128*i}")
    A(f"s_branch {name}_ldy")
    A(f"{name}_ldb:")
    srd(A, 8, 24, 4 << 20, WS_X2)
    srd(A, 12, 24, 4 << 20, WS_X2B)
    for i in range(2):
        A(f"buffer_load_dwordx4 {vr(RX+4*i,4)}, v2, s[8:11], s{28+i} offen")
        A(f"buffer_load_dwordx4 {vr(RB+4*i,4)}, v2, s[12:15], s{28+i} offen")
    A(f"{name}_ldy:")
    srd(A, 12, 24, 256*YGS, WS_Y)
    for i in range(2):
        A(f"buffer_load_dwordx2 {vr(RY+4*i,2)}, v9, s[12:15], s{37+i} offen")
        A(f"buffer_load_dwordx2 {vr(RY+4*i+2,2)}, v14, s[12:15], s{37+i} offen")
    npf = 0
    if wrows:
        lines = wrows*56*2 // 2048
        A("s_lshl_b32 s33, s2, 3\ns_add_u32 s33, s33, s26\ns_cmp_lt_u32 s33, 1024\ns_cselect_b32 s68, s64, s66\ns_cselect_b32 s69, s65, s67")
        A(f"s_mul_i32 s70, s60, {wrows*7168}\ns_mov_b32 s71, 0x20000\ns_and_b32 s33, s33, 1023\ns_mul_i32 s33, s33, {lines*128}")
        A(f"v_lshlrev_b32 v1, 7, v15\ns_mov_b32 exec_lo, {hex((1<<min(32,lines))-1)}\ns_mov_b32 exec_hi, {hex((1<<max(0,lines-32))-1)}")
        A("buffer_load_dword v72, v1, s[68:71], s33 offen\ns_mov_b64 exec, -1")
        npf = 1
    srd(A, 16, 24, 4 << 20, WS_X1)
    srd(A, 20, 24, 4 << 20, WS_XN)
    A("v_lshlrev_b32 v8, 6, v4\ns_lshl_b32 s33, s26, 3\nv_add_u32 v7, s33, v8")
    A(f"s_mov_b32 s34, 0x3f803f80\ns_mov_b32 s35, {f2u(1e-5)}\ns_mov_b32 s36, {f2u(1.0/1024)}")
    A(f"s_getpc_b64 s[52:53]\n{name}_pc:\ns_add_u32 s52, s52, {name}_stats-{name}_pc\ns_addc_u32 s53, s53, 0")
    def unpack(dst, raw):
        for i in range(8):
            A(f"v_lshlrev_b32 v{dst+2*i}, 16, v{raw+i}\nv_and_b32 v{dst+2*i+1}, 0xffff0000, v{raw+i}")
    A("s_cmp_eq_u32 s60, 1")
    A(f"s_waitcnt vmcnt({4+npf})")
    unpack(X, RX)
    A(f"s_cbranch_scc1 {name}_go")
    unpack(Y, RB)
    for i in range(8): A(f"v_pk_add_f32 {vr(X+2*i,2)}, {vr(X+2*i,2)}, {vr(Y+2*i,2)}")
    for i in range(8): A(f"v_cvt_pk_bf16_f32 v{RX+i}, v{X+2*i}, v{X+2*i+1}")
    A(f"{name}_go:")
    if stamps: A("s_memtime s[42:43]")
    A("s_swappc_b64 s[54:55], s[52:53]")
    if stamps: A("s_memtime s[80:81]")
    A(f"s_waitcnt vmcnt({npf})")
    if stamps: A("s_memtime s[82:83]")
    for i in range(8):
        A(f"v_lshlrev_b32 v{RB}, 16, v{RY+i}\nv_and_b32 v{RB+1}, 0xffff0000, v{RY+i}")
        A(f"v_pk_fma_f32 {vr(Z+2*i,2)}, {vr(X+2*i,2)}, v[12:13], v[10:11] op_sel_hi:[1,0,0]")
        A(f"v_pk_fma_f32 {vr(X+2*i,2)}, {vr(Z+2*i,2)}, {vr(RB,2)}, {vr(X+2*i,2)}")
        A(f"v_cvt_pk_bf16_f32 v{RX+i}, v{X+2*i}, v{X+2*i+1}")
    for i in range(2): A(f"buffer_store_dwordx4 {vr(RX+4*i,4)}, v2, s[16:19], s{28+i} offen {sf}")
    if stamps: A("s_memtime s[84:85]")
    A("v_add_u32 v7, 512, v7\nv_add_u32 v8, 512, v8")
    A("s_swappc_b64 s[54:55], s[52:53]")
    if stamps: A("s_memtime s[44:45]")
    for i in range(8):
        A(f"v_pk_fma_f32 {vr(Z+2*i,2)}, {vr(X+2*i,2)}, v[12:13], v[10:11] op_sel_hi:[1,0,0]")
        A(f"v_cvt_pk_bf16_f32 v{RY+i}, v{Z+2*i}, v{Z+2*i+1}")
        if i % 4 == 3: A(f"buffer_store_dwordx4 {vr(RY+i-3,4)}, v2, s[20:23], s{28+i//4} offen {sf}")
    if stamps:
        A(f"s_cmp_ge_u32 s26, 4\ns_cbranch_scc1 {name}_end")
        stamp_tail(A)
        A(f"s_lshl_b32 s29, s2, 2\ns_add_u32 s29, s29, s26\ns_lshl_b32 s29, s29, 5\ns_lshl_b32 s30, s60, 15\ns_add_u32 s29, s29, s30\ns_add_u32 s29, s29, {13<<15}")
        A("v_mov_b32 v8, s40\nv_mov_b32 v9, s42\nv_mov_b32 v10, s80\nv_mov_b32 v11, s82\nv_mov_b32 v4, s84\nv_mov_b32 v5, s44\nv_mov_b32 v6, s46\nv_mov_b32 v7, 0")
        A("buffer_store_dwordx4 v[8:11], v14, s[8:11], s29 offen")
        A("buffer_store_dwordx4 v[4:7], v14, s[8:11], s29 offen offset:16")
    A(f"{name}_end:\ns_endpgm")
    A(f"{name}_stats:")
    A("v_mov_b32 v10, 0\nv_mov_b32 v11, 0\nv_mov_b32 v12, 0\nv_mov_b32 v13, 0")
    for i in range(0, 8, 2):
        A(f"v_dot2c_f32_bf16 v10, s34, v{RX+i}\nv_dot2c_f32_bf16 v11, v{RX+i}, v{RX+i}")
        A(f"v_dot2c_f32_bf16 v12, s34, v{RX+i+1}\nv_dot2c_f32_bf16 v13, v{RX+i+1}, v{RX+i+1}")
    A("s_nop 2")
    A("v_pk_add_f32 v[10:11], v[10:11], v[12:13]")
    A("s_nop 1")
    A("v_add_f32_dpp v10, v10, v10 row_ror:8 row_mask:0xf bank_mask:0xf\nv_add_f32_dpp v11, v11, v11 row_ror:8 row_mask:0xf bank_mask:0xf")
    for sw in ("v_permlane16_swap_b32", "v_permlane32_swap_b32"):
        A("v_mov_b32 v12, v10\nv_mov_b32 v13, v11\ns_nop 1")
        A(f"{sw} v10, v12\n{sw} v11, v13")
        A("s_nop 0")
        A("v_pk_add_f32 v[10:11], v[10:11], v[12:13]")
    A(f"ds_write_b64 v7, v[10:11]\ns_waitcnt lgkmcnt(0)\ns_barrier")
    for k in range(4): A(f"ds_read_b128 {vr(Z+4*k,4)}, v8 offset:{16*k}")
    A("s_waitcnt lgkmcnt(2)")
    A(f"v_pk_add_f32 {vr(Z,2)}, {vr(Z,2)}, {vr(Z+2,2)}\nv_pk_add_f32 {vr(Z+4,2)}, {vr(Z+4,2)}, {vr(Z+6,2)}")
    A("s_waitcnt lgkmcnt(0)")
    A(f"v_pk_add_f32 {vr(Z+8,2)}, {vr(Z+8,2)}, {vr(Z+10,2)}\nv_pk_add_f32 {vr(Z+12,2)}, {vr(Z+12,2)}, {vr(Z+14,2)}")
    A(f"v_pk_add_f32 {vr(Z,2)}, {vr(Z,2)}, {vr(Z+4,2)}\nv_pk_add_f32 {vr(Z+8,2)}, {vr(Z+8,2)}, {vr(Z+12,2)}")
    A(f"v_pk_add_f32 v[10:11], {vr(Z,2)}, {vr(Z+8,2)}")
    A("v_mul_f32 v10, s36, v10\nv_mul_f32 v11, s36, v11\nv_fma_f32 v11, -v10, v10, v11\nv_max_f32 v11, 0, v11")
    round_bf16(A, 10); round_bf16(A, 11)
    A("v_add_f32 v11, s35, v11"); round_bf16(A, 11)
    A("v_sqrt_f32 v11, v11\ns_nop 0"); round_bf16(A, 11)
    A("v_rcp_f32 v12, v11\ns_nop 0\nv_mul_f32 v10, -v10, v12")
    A("s_setpc_b64 s[54:55]")
    return kernel_desc(names[0], 80, 80) + "\n.p2align 6\n" + kernel_desc(names[1], 80, 80)
```

```python
import sys
from asmlib import *
from gemm1 import *
from gemm1v3 import gen_gemm1v3, G1_LDS
from gemm2v3 import gen_gemm2v3, G2_LDS
from convv2 import gen_convv2, CONV_LDS
from lnv3 import gen_lnv3
from lnk import gen_fin

HEADER = open("interleave_layers__ssm_conv_h3__geglu_ffn__prompt.s.ref").read().split("; Override launch")[0]

def build_all(stamps=False, g1={}, g2={}, ln={}, cv={}, fin={}):
    launches = [HEADER.rstrip("\n"),
        f"; @launch kernel=conv_kernel grid=(256,1,1) block=(512,1,1) lds={CONV_LDS}",
        "; @launch kernel=lna_kernel grid=(256,1,1) block=(512,1,1) lds=1024",
        f"; @launch kernel=gemm1a_kernel grid=(256,1,1) block=(256,1,1) lds={G1_LDS}",
        f"; @launch kernel=gemm2_kernel grid=(256,1,1) block=(256,1,1) lds={G2_LDS}",
        "; @launch kernel=lnb_kernel grid=(256,1,1) block=(512,1,1) lds=1024",
        f"; @launch kernel=gemm1b_kernel grid=(256,1,1) block=(256,1,1) lds={G1_LDS}",
        f"; @launch kernel=gemm2_kernel grid=(256,1,1) block=(256,1,1) lds={G2_LDS}",
        "; @launch kernel=fin_kernel grid=(256,1,1) block=(256,1,1) lds=0"]
    cvk = dict(codepf=("code_begin", "code_end", 6), wpre="none"); cvk.update(cv)
    def first(A):
        A("code_begin:")
        return gen_convv2(A, stamps=stamps, **cvk)
    def last(A):
        d = gen_fin(A, stamps=stamps, **fin)
        A("code_end:")
        return d
    gens = [first,
            lambda A: gen_lnv3(A, stamps=stamps, **ln),
            lambda A: gen_gemm1v3(A, stamps=stamps, **g1),
            lambda A: gen_gemm2v3(A, stamps=stamps, **g2),
            last]
    return wrap(launches, gens)

if __name__ == "__main__":
    open("interleave_layers__ssm_conv_h3__geglu_ffn__prompt.s", "w").write(build_all())
```

```python
from asmlib import *
from gemm1 import WS_XN, WS_H, WS_X1, WS_Y, WS_X2, WS_STAMP, f2u, wrap, stamp_tail

YGS = 16384 + 128
CONV_LDS = 18432 + 4*8320 + 16384

def code_prefetch(A, start, end_, vdst, wave_sgpr, nwaves, tmp=70, lane16="v3"):
    lab = f"pf_{start}_{vdst}"
    A(f"s_getpc_b64 s[{tmp}:{tmp+1}]\n{lab}:")
    A(f"s_add_u32 s{tmp}, s{tmp}, {start}-{lab}\ns_addc_u32 s{tmp+1}, s{tmp+1}, ({start}-{lab})>>63")
    A(f"s_and_b32 s{tmp+1}, s{tmp+1}, 0xffff\ns_mov_b32 s{tmp+2}, {end_}-{start}\ns_mov_b32 s{tmp+3}, 0x20000")
    return tmp

def gen_convv2(A, name="conv_kernel", stamps=False, sf="sc1", wpre="end", l2pre=True, codepf=None, zero=None, tlb=0):
    UP = 4608; KB = 18432; KW = 8320; OB = 4160; YB = KB + 4*KW
    kernel_begin(A, name)
    A("s_cmp_ge_u32 s2, 256\ns_cbranch_scc1 %s_end" % name)
    A("s_load_dwordx8 s[4:11], s[0:1], 8")
    A("s_load_dwordx2 s[12:13], s[0:1], 40")
    A("s_load_dwordx4 s[84:87], s[0:1], 56")
    A("s_load_dwordx2 s[24:25], s[0:1], 96")
    if stamps: A("s_memtime s[40:41]\ns_memrealtime s[50:51]")
    A("v_lshrrev_b32 v1, 6, v0")
    A("v_and_b32 v15, 63, v0")
    A("v_readfirstlane_b32 s26, v1")
    A("v_lshlrev_b32 v3, 4, v15")
    if codepf:
        A(f"s_getpc_b64 s[72:73]\n{name}_pc:")
        A(f"s_sub_u32 s72, s72, {name}_pc-{codepf[0]}\ns_subb_u32 s73, s73, 0")
        A(f"s_mov_b32 s74, {codepf[1]}-{codepf[0]}\ns_mov_b32 s75, 0x20000\ns_lshl_b32 s28, s26, 10")
        for i in range(codepf[2]):
            A(f"buffer_load_dword v14, v3, s[72:75], s28 offen")
            if i + 1 < codepf[2]: A("s_add_u32 s28, s28, 8192")
    A("s_and_b32 s27, s2, 7\ns_lshl_b32 s27, s27, 5\ns_lshr_b32 s28, s2, 3\ns_add_u32 s27, s27, s28\ns_lshl_b32 s27, s27, 3")
    A("v_and_b32 v0, 255, v0")
    A(f"s_cmp_ge_u32 s26, 4\ns_cbranch_scc1 {name}_loader")
    def wprefetch(wave4):
        A(f"s_lshl_b32 s28, s2, 2\ns_add_u32 s28, s28, {wave4}\ns_and_b32 s29, s28, 511\ns_mul_i32 s29, s29, 14336")
        A("s_cmp_lt_u32 s28, 512\ns_cselect_b32 s76, s84, s86\ns_cselect_b32 s77, s85, s87")
        A(f"s_mov_b32 s78, {1024*7168}\ns_mov_b32 s79, 0x20000")
        A("v_lshlrev_b32 v8, 7, v15")
        A("buffer_load_dword v14, v8, s[76:79], s29 offen\ns_add_u32 s29, s29, 8192")
        A("s_mov_b32 exec_hi, 0xffff\nbuffer_load_dword v14, v8, s[76:79], s29 offen\ns_mov_b32 exec_hi, -1")
    ACC = 16; BR = 48; SA = 64; AD = 88; AV = 92; SK = 48; T = 64
    def areg(m):
        return ar(4*m, 4) if m < 36 else vr(AV + 4*(m-36), 4)
    A("s_waitcnt lgkmcnt(0)")
    A("s_lshr_b32 s28, s27, 1\ns_add_u32 s28, s28, s26\ns_lshl_b32 s28, s28, 12")
    A("s_add_u32 s16, s10, s28\ns_addc_u32 s17, s11, 0\ns_mov_b32 s18, 4096\ns_mov_b32 s19, 0x20000")
    for i in range(4):
        A(f"buffer_load_dwordx4 {vr(SK+4*i,4)}, v3, s[16:19], 0 offen offset:{1024*i}")
    A("s_add_u32 s12, s12, s27\ns_addc_u32 s13, s13, 0\ns_load_dwordx2 s[60:61], s[12:13], 0")
    if tlb:
        step = (104 << 20) // (128*tlb)
        A(f"s_lshr_b32 s28, s2, 3\ns_lshl_b32 s28, s28, 2\ns_add_u32 s28, s28, s26\ns_mul_i32 s29, s28, {step*tlb}")
        for k in range(tlb):
            A(f"s_load_dword s64, s[24:25], s29")
            if k + 1 < tlb: A(f"s_add_u32 s29, s29, {step}")
        A("s_load_dwordx2 s[66:67], s[0:1], 0\ns_load_dwordx4 s[68:71], s[0:1], 72\ns_waitcnt lgkmcnt(0)") if False else None
    npre = 0
    if wpre == "start": wprefetch("s26"); npre = 2
    A(f"s_mul_i32 s29, s26, {UP}\ns_mul_i32 s30, s26, {KW}\ns_add_u32 s30, s30, {KB}")
    A("v_mov_b32 v6, 0\nv_mov_b32 v7, 0")
    A("v_lshlrev_b32 v8, 3, v15\nv_add_u32 v9, s29, v8")
    A("ds_write_b64 v9, v[6:7] offset:4096")
    A("v_add_u32 v9, s30, v8\ns_mov_b64 exec, 15")
    A(f"ds_write_b64 v9, v[6:7]\nds_write_b64 v9, v[6:7] offset:{OB}")
    A("s_mov_b64 exec, -1")
    for i in range(32): A(f"v_mov_b32 v{ACC+i}, 0")
    A("v_and_b32 v4, 15, v15\nv_lshrrev_b32 v5, 4, v15")
    A("v_lshlrev_b32 v10, 4, v5\nv_lshlrev_b32 v8, 5, v4\nv_sub_u32 v10, v10, v8\nv_add_u32 v10, 480, v10\nv_add_u32 v10, s29, v10")
    A("v_add_u32 v12, s30, v3")
    A(f"v_and_b32 v8, 1, v4\nv_mul_u32_u24 v8, {OB+2}, v8\nv_lshl_add_u32 v8, v4, 1, v8\nv_lshl_add_u32 v8, v5, 4, v8\nv_add_u32 v13, s30, v8")
    A(f"v_add_u32 v1, {40*64}, v13\nv_add_u32 v2, {56*64}, v13")
    A(f"s_lshl_b32 s29, s26, 12\ns_add_u32 s29, s29, {YB}")
    A("v_lshlrev_b32 v11, 5, v4\nv_lshl_add_u32 v11, v5, 3, v11\nv_add_u32 v11, s29, v11")
    A(f"v_lshlrev_b32 v9, 2, v0\nv_add_u32 v9, {YB}, v9\nv_lshlrev_b32 v6, 4, v0")
    A(f"s_lshr_b32 s29, s27, 3\ns_mul_i32 s29, s29, {YGS}\ns_add_u32 s29, s29, {WS_Y}\ns_add_u32 s32, s24, s29\ns_addc_u32 s33, s25, 0\ns_mov_b32 s34, 16384\ns_mov_b32 s35, 0x20000")
    A("s_mov_b32 s20, 0x05040100\ns_mov_b32 s21, 0x07060302")
    A("s_waitcnt lgkmcnt(0)")
    A("s_cmp_lt_u32 s26, 2\ns_cselect_b32 s62, s60, s61\ns_and_b32 s63, s26, 1\ns_lshl_b32 s63, s63, 4\ns_lshr_b32 s62, s62, s63\ns_and_b32 s62, s62, 0xffff")
    A("v_lshlrev_b32 v8, 3, v5\nv_add_u32 v8, v8, v4\nv_sub_u32 v8, 15, v8")
    A("v_and_b32 v7, 1, v8\nv_lshlrev_b32 v7, 4, v7\nv_lshlrev_b32 v7, v7, s62\nv_ashrrev_i32 v8, 1, v8")
    for j in range(4):
        A(f"v_cmp_eq_u32 vcc, {j}, v8\ns_nop 1\nv_cndmask_b32 v{AD+j}, 0, v7, vcc")
    A(f"s_waitcnt vmcnt({npre})")
    for i in range(4):
        A(f"ds_write_b128 v12, {vr(SK+4*i,4)} offset:{OB+32+1024*i}")
    for i in range(4):
        t = T + 8*(i % 2)
        if i < 3: A(f"v_readfirstlane_b32 s28, v{SK+4*(i+1)}\ns_nop 1\nv_mov_b32 v{t+4}, s28")
        else: A(f"v_mov_b32 v{t+4}, 0")
        A(f"s_nop 1\nv_mov_b32_dpp v{t+4}, v{SK+4*i} wave_shl:1 row_mask:0xf bank_mask:0xf")
        for j in range(4):
            hi = f"v{SK+4*i+j+1}" if j < 3 else f"v{t+4}"
            A(f"v_alignbyte_b32 v{t+j}, {hi}, v{SK+4*i+j}, 2")
        A(f"ds_write_b128 v12, {vr(t,4)} offset:{32+1024*i}")
    A(f"v_lshlrev_b32 v8, 16, v{SK}\ns_mov_b64 exec, 1\nds_write_b32 v12, v8 offset:28\ns_mov_b64 exec, -1")
    A("s_waitcnt lgkmcnt(0)")
    def aread(dst_lo, dst_hi, base, o):
        A(f"ds_read2_b32 {dst_lo}, {base} offset0:{o} offset1:{o+1}")
        A(f"ds_read2_b32 {dst_hi}, {base} offset0:{o+2} offset1:{o+3}")
    for m in range(40):
        if m and m % 15 == 0: A(f"v_add_u32 v13, {15*64}, v13")
        p, b = ("a", 4*m) if m < 36 else ("v", AV + 4*(m-36))
        aread(vr(b,2,p), vr(b+2,2,p), "v13", (m % 15)*16)
    if stamps: A("s_memtime s[42:43]")
    def ystore(c):
        for ch in range(4): A(f"ds_read_b32 v{SA+ch}, v9 offset:{ch*4096 + 1024*c}")
        A("s_waitcnt lgkmcnt(0)")
        o = SA + 4
        A(f"v_perm_b32 v{o}, v{SA+1}, v{SA}, s20\nv_perm_b32 v{o+1}, v{SA+3}, v{SA+2}, s20")
        A(f"v_perm_b32 v{o+2}, v{SA+1}, v{SA}, s21\nv_perm_b32 v{o+3}, v{SA+3}, v{SA+2}, s21")
        A(f"s_mov_b32 s28, {4096*c}")
        A(f"buffer_store_dwordx4 {vr(o,4)}, v6, s[32:35], s28 offen {sf}")
    for c in range(4):
        if wpre == f"b{c}": wprefetch("s26")
        A("s_waitcnt lgkmcnt(0)\ns_barrier")
        def reads(r):
            pb = r % 2
            for e in range(2):
                A(f"ds_read_b128 {vr(BR + 8*pb + 4*e, 4)}, v10 offset:{3584 - 64*(8*(2*c+e) - r)}")
            for m1 in range(5, 8 - 2*c):
                m = 8*m1 + r; d = SA + 12*pb + 4*(m1-5)
                base, o = ("v1", (m-40)*16) if m < 56 else ("v2", (m-56)*16)
                aread(vr(d,2), vr(d+2,2), base, o)
        if c >= 2: ystore(c-1)
        reads(0)
        for r in range(8):
            A("s_waitcnt lgkmcnt(0)")
            pb = r % 2
            seq = []
            for m1 in range(0, 8 - 2*c):
                a = areg(8*m1 + r) if m1 < 5 else vr(SA + 12*pb + 4*(m1-5), 4)
                seq.append((2*c + m1, a, 0))
                if 2*c + 1 + m1 <= 7: seq.append((2*c + 1 + m1, a, 1))
            if r == 0: seq += [(2*c, vr(AD,4), 0), (2*c+1, vr(AD,4), 1)]
            for k, (nb, a, e) in enumerate(seq):
                A(f"v_mfma_f32_16x16x32_bf16 {vr(ACC+4*nb,4)}, {a}, {vr(BR+8*pb+4*e,4)}, {vr(ACC+4*nb,4)}")
                if k == 0 and r < 7: reads(r+1)
        if c == 1: ystore(0)
        A("s_nop 7")
        for nb in (2*c, 2*c+1):
            t = BR + 2*(nb % 2)
            A(f"v_cvt_pk_bf16_f32 v{t}, v{ACC+4*nb}, v{ACC+4*nb+1}\nv_cvt_pk_bf16_f32 v{t+1}, v{ACC+4*nb+2}, v{ACC+4*nb+3}")
            A(f"ds_write_b64 v11, {vr(t,2)} offset:{512*nb}")
    if stamps: A("s_memtime s[44:45]")
    A("s_waitcnt lgkmcnt(0)\ns_barrier")
    ystore(3)
    if zero is not None:
        A(f"s_lshl_b32 s28, s26, 8\ns_add_u32 s28, s28, s2\ns_cmp_ge_u32 s28, 128\ns_cbranch_scc1 {name}_nz")
        srd(A, 16, 24, 131072, zero)
        A("s_lshl_b32 s28, s28, 10\nv_mov_b32 v16, 0\nv_mov_b32 v17, 0\nv_mov_b32 v18, 0\nv_mov_b32 v19, 0")
        A("buffer_store_dwordx4 v[16:19], v3, s[16:19], s28 offen")
        A(f"{name}_nz:")
    if stamps: stamp_tail(A)
    A("s_endpgm")
    A(f"{name}_loader:")
    LD = 16; T = 72
    A("s_sub_u32 s26, s26, 4")
    A("v_lshlrev_b32 v2, 12, v0")
    A("v_lshlrev_b32 v11, 2, v0\nv_sub_u32 v11, 1020, v11")
    A("s_waitcnt lgkmcnt(0)")
    A("s_lshl_b32 s28, s27, 2\ns_add_u32 s8, s8, s28\ns_addc_u32 s9, s9, 0\ns_load_dwordx8 s[52:59], s[8:9], 0")
    if l2pre:
        A("s_and_b32 s28, s26, 1\ns_cmp_eq_u32 s28, 0\ns_cselect_b32 s16, s4, s6\ns_cselect_b32 s17, s5, s7")
        A(f"s_mov_b32 s18, {4<<20}\ns_mov_b32 s19, 0x20000")
        A("s_lshr_b32 s28, s2, 3\ns_lshl_b32 s28, s28, 17\ns_and_b32 s29, s2, 7\ns_lshl_b32 s29, s29, 8\ns_add_u32 s28, s28, s29\ns_lshr_b32 s29, s26, 1\ns_lshl_b32 s29, s29, 7\ns_add_u32 s28, s28, s29")
        A("v_lshlrev_b32 v13, 11, v15\nbuffer_load_dword v14, v13, s[16:19], s28 offen")
    A(f"s_add_u32 s32, s4, s27\ns_addc_u32 s33, s5, 0\ns_sub_u32 s34, {4<<20}, s27\ns_mov_b32 s35, 0x20000")
    A(f"s_add_u32 s36, s6, s27\ns_addc_u32 s37, s7, 0\ns_mov_b32 s38, s34\ns_mov_b32 s39, 0x20000")
    def L(c, n): return LD + 14*c + 2*n
    def loads(c):
        A(f"v_add_u32 v4, {(c<<20) - 6144 & 0xffffffff}, v2\nv_add_u32 v5, {(c<<20) - 2048 & 0xffffffff}, v2")
        A(f"s_mov_b32 s28, {c<<20}")
        A("s_mov_b64 exec, 1")
        A(f"buffer_load_dwordx2 {vr(L(c,6),2)}, v4, s[32:35], 0 offen")
        A(f"buffer_load_dwordx2 {vr(L(c,5),2)}, v4, s[32:35], 0 offen offset:2048")
        A(f"buffer_load_dwordx2 {vr(L(c,4),2)}, v5, s[32:35], 0 offen")
        A("s_mov_b64 exec, -1")
        A(f"buffer_load_dwordx2 {vr(L(c,0),2)}, v2, s[32:35], s28 offen")
        A(f"buffer_load_dwordx2 {vr(L(c,1),2)}, v2, s[32:35], s28 offen offset:2048")
        A(f"buffer_load_dwordx2 {vr(L(c,2),2)}, v2, s[36:39], s28 offen")
        A(f"buffer_load_dwordx2 {vr(L(c,3),2)}, v2, s[36:39], s28 offen offset:2048")
    def kvchunk(c, nout):
        if stamps: A(f"s_memtime s[{88+2*(c%2)}:{89+2*(c%2)}]") if c < 2 else None
        A(f"s_waitcnt vmcnt({nout})")
        if stamps: A(f"s_memtime s[{(42,44,46,48)[c]}:{(42,44,46,48)[c]+1}]")
        kA, kB, vA, vB, Bm1, Am1, Bm2 = [L(c, n) for n in range(7)]
        for p in range(2):
            A(f"v_mov_b32_dpp v{Bm1+p}, v{kB+p} wave_shr:1 row_mask:0xf bank_mask:0xf")
            A(f"v_mov_b32_dpp v{Am1+p}, v{kA+p} wave_shr:1 row_mask:0xf bank_mask:0xf")
        def F(row, p): return T + (row*2+p)*2
        rows = {1: Am1, 2: Bm1, 3: kA, 4: kB, 5: vA, 6: vB}
        for row in (3, 4):
            for p in range(2):
                A(f"v_lshlrev_b32 v{F(row,p)}, 16, v{rows[row]+p}\nv_and_b32 v{F(row,p)+1}, 0xffff0000, v{rows[row]+p}")
        for p in range(2):
            A(f"v_mov_b32_dpp v{Bm2+p}, v{Bm1+p} wave_shr:1 row_mask:0xf bank_mask:0xf")
        rows[0] = Bm2
        for row in (1, 2, 5, 6, 0):
            for p in range(2):
                A(f"v_lshlrev_b32 v{F(row,p)}, 16, v{rows[row]+p}\nv_and_b32 v{F(row,p)+1}, 0xffff0000, v{rows[row]+p}")
        R = T + 28
        for i in range(4):
            for r in range(2):
                for ch in range(4):
                    p, e = ch >> 1, ch & 1
                    d = R + (r*2+p)*2 + e; src = F(3 + r - i, p) + e; sc = 64 + (i*2+p)*2 + e
                    if i == 0: A(f"v_mul_f32 v{d}, s{sc}, v{src}")
                    else: A(f"v_fmac_f32 v{d}, s{sc}, v{src}")
        for r in range(2):
            for ch in range(4):
                p, e = ch >> 1, ch & 1
                d = R + (r*2+p)*2 + e
                A(f"v_mul_f32 v{d}, v{d}, v{F(5+r,p)+e}")
        for ch in range(4):
            p, e = ch >> 1, ch & 1
            A(f"v_cvt_pk_bf16_f32 v{T+ch}, v{R + (1*2+p)*2 + e}, v{R + (0*2+p)*2 + e}")
        for ch in range(4):
            A(f"ds_write_b32 v11, v{T+ch} offset:{ch*UP + 3072 - 1024*c}")
        A("s_waitcnt lgkmcnt(0)\ns_barrier")
    loads(0); loads(1)
    A("s_waitcnt lgkmcnt(0)")
    for i in range(4):
        for p in range(2):
            for e in range(2):
                ch = 2*p + e
                src = 52 + 2*ch + (i >> 1)
                dst = 64 + (i*2+p)*2 + e
                A(f"s_lshl_b32 s{dst}, s{src}, 16" if i % 2 == 0 else f"s_and_b32 s{dst}, s{src}, 0xffff0000")
    kvchunk(0, 7)
    loads(2); kvchunk(1, 7)
    loads(3); kvchunk(2, 7)
    if wpre == "mid":
        A("s_mov_b32 s64x, 0" if False else "")
    kvchunk(3, 0)
    if wpre == "end": wprefetch("s26")
    A("s_barrier")
    if wpre == "post": wprefetch("s26")
    if stamps:
        A("s_waitcnt lgkmcnt(0)")
        srd(A, 8, 24, 1 << 20, WS_STAMP)
        A(f"s_lshl_b32 s29, s2, 2\ns_add_u32 s29, s29, s26\ns_lshl_b32 s29, s29, 5\ns_add_u32 s29, s29, {15<<15}")
        A("v_mov_b32 v8, s40\nv_mov_b32 v9, s42\nv_mov_b32 v10, s44\nv_mov_b32 v11, s46\nv_mov_b32 v4, s48\nv_mov_b32 v5, s88\nv_mov_b32 v6, s90\nv_mov_b32 v7, 0\nv_mov_b32 v14, 0")
        A("s_mov_b64 exec, 1")
        A("buffer_store_dwordx4 v[8:11], v14, s[8:11], s29 offen")
        A("buffer_store_dwordx4 v[4:7], v14, s[8:11], s29 offen offset:16")
    A(f"{name}_end:\ns_endpgm")
    return kernel_desc(name, 256, 112)

if __name__ == "__main__":
    s = wrap([f"; @launch kernel=conv_kernel grid=(256,1,1) block=(512,1,1) lds={CONV_LDS}"], [lambda A: gen_convv2(A, stamps=True)])
    open("cv.s", "w").write(s)
```

```python
from asmlib import *
from gemm1 import f2u, wrap
from convv2 import YGS

LSTRIDE = 48 << 20
O_XN, O_H, O_T0, O_T1 = 0, 5 << 20, 20 << 20, 26 << 20
WS_WDP = 32 << 20
WS_Y = 44 << 20
WS_Y = 100 << 20
WS_FLAG = 112 << 20
WS_STAMP = 120 << 20
F_A, F_B, F_D, F_C = 0, 8, 24, 40
MEGA_LDS = 114688 + 32768
LN_LDS = 114688 + 7*4096

class Stamper:
    def __init__(s, A, on): s.A, s.on, s.n, s.names = A, on, 0, []
    def __call__(s, name):
        if not s.on: return
        s.A(f"s_memrealtime s[92:93]\ns_waitcnt lgkmcnt(0)\ns_add_u32 m0, s94, {s.n}\ns_nop 0\nv_writelane_b32 v0, s92, m0")
        s.names.append(name); s.n += 1

def lane(A, v):
    A(f"v_mbcnt_lo_u32_b32 v{v}, -1, 0\nv_mbcnt_hi_u32_b32 v{v}, -1, v{v}")

_uid = [0]
SLEEP = [1]
NREP = [4]
KPV = [4096]
def signal(A, off, tgt):
    _uid[0] += 1; u = _uid[0]
    A("s_waitcnt vmcnt(0)\ns_barrier")
    A(f"s_cmp_lg_u32 s26, 0\ns_cbranch_scc1 sig{u}")
    A("v_mov_b32 v26, 0\nv_mov_b32 v27, 1\ns_mov_b64 exec, 1")
    A(f"buffer_atomic_add v27, v26, s[88:91], {off} offen sc0 sc1")
    A(f"s_mov_b64 exec, -1\nv_lshl_add_u32 v26, v31, 7, 64\nv_add_u32 v26, 64, v26\ns_waitcnt vmcnt(0)\nv_readfirstlane_b32 s96, v27")
    A(f"s_cmp_lg_u32 s96, {tgt-1}\ns_cbranch_scc1 sig{u}")
    A(f"v_mov_b32 v27, 1\ns_mov_b64 exec, {(1<<NREP[0])-1}")
    A(f"buffer_store_dword v27, v26, s[88:91], {off} offen sc1")
    A(f"s_mov_b64 exec, -1\nsig{u}:")
def post(A, offs):
    _uid[0] += 1; u = _uid[0]
    A(f"s_cmp_lg_u32 s26, 0\ns_cbranch_scc1 sig{u}")
    A("v_mov_b32 v26, 0\nv_mov_b32 v27, 1\ns_mov_b64 exec, 1")
    for o in offs: A(f"buffer_atomic_add v27, v26, s[88:91], {o} offen sc1")
    A(f"s_mov_b64 exec, -1\nsig{u}:")
def wait(A, off, tgt=None):
    _uid[0] += 1; u = _uid[0]
    A(f"s_cmp_lg_u32 s26, 0\ns_cbranch_scc1 wt{u}")
    A(f"v_mov_b32 v26, {'s97' if tgt is None else 0}\ns_mov_b32 s95, 0x200000")
    A(f"wp{u}:\nbuffer_load_dword v27, v26, s[88:91], {off} offen sc1\ns_waitcnt vmcnt(0)\nv_readfirstlane_b32 s96, v27")
    A(f"s_cmp_ge_u32 s96, {1 if tgt is None else tgt}\ns_cbranch_scc1 wt{u}\ns_sleep {SLEEP[0]}\ns_sub_u32 s95, s95, 1\ns_cmp_lg_u32 s95, 0\ns_cbranch_scc1 wp{u}")
    A(f"wt{u}:\ns_barrier")

def round_bf16(A, v):
    A(f"v_cvt_pk_bf16_f32 v{v}, v{v}, v{v}\nv_and_b32 v{v}, 0xffff0000, v{v}")

def tg_map(A):
    A("s_lshr_b32 s3, s2, 4\ns_lshl_b32 s3, s3, 3\ns_and_b32 s29, s2, 7\ns_add_u32 s3, s3, s29\ns_lshl_b32 s3, s3, 1\ns_bfe_u32 s29, s2, 0x10003\ns_add_u32 s3, s3, s29")
    A("v_and_b32 v16, 7, v31\nv_bfe_u32 v17, v31, 3, 2\nv_lshrrev_b32 v18, 5, v31")
    KP = KPV[0]
    A(f"v_mul_u32_u24 v12, {KP}, v18\nv_lshl_add_u32 v12, v17, 7, v12\nv_lshl_add_u32 v12, v16, 4, v12")
    A(f"s_lshr_b32 s29, s3, 3\ns_lshl_b32 s29, s29, 2\ns_add_u32 s29, s29, s26\ns_mul_i32 s29, s29, {8*KP}")
    A("s_bfe_u32 s30, s3, 0x20001\ns_lshl_b32 s30, s30, 10\ns_add_u32 s29, s29, s30\ns_and_b32 s30, s3, 1\ns_lshl_b32 s30, s30, 9\ns_add_u32 s29, s29, s30")
    A(f"s_add_u32 s30, s29, {2*KP}\ns_add_u32 s31, s29, {4*KP}\ns_add_u32 s32, s29, {6*KP}")
    A("v_lshlrev_b32 v13, 11, v16\nv_lshl_add_u32 v13, v18, 6, v13\nv_lshl_add_u32 v13, v17, 4, v13")
    A("s_lshl_b32 s33, s3, 14\ns_lshl_b32 s34, s26, 9\ns_add_u32 s33, s33, s34")

def gen_mega(A, name="main_kernel", stamps=False, sf="sc1", LAX=4, NWPRE=2, w0="early", sleep=1, KP=4096, nrep=4,
             wpos=(0,2,4,6,8,10,12), xpos=(15,17,19,20,22,24,25,27), barpos=14, ppos=13, slots_pat=("V","V","T","A"),
             g2D=6, g2LW=7, g2bar=16, hpos=(0,3,6,9,12,15,18,21)):
    ST = Stamper(A, stamps)
    SLEEP[0] = sleep
    NREP[0] = nrep
    KPV[0] = KP
    XFB = 1024*KP
    kernel_begin(A, name)
    A("s_cmp_ge_u32 s2, 256\ns_cbranch_scc1 %s_end" % name)
    A("s_load_dwordx2 s[80:81], s[0:1], 0")
    A("s_load_dwordx2 s[24:25], s[0:1], 96")
    A("s_load_dwordx4 s[4:7], s[0:1], 56")
    A("s_load_dwordx2 s[52:53], s[0:1], 72")
    A("s_load_dwordx2 s[82:83], s[0:1], 80")
    A("v_lshrrev_b32 v1, 6, v0")
    A("s_mov_b32 s60, 1\ns_mov_b32 s94, 0")
    A("v_readfirstlane_b32 s26, v1")
    A("s_waitcnt lgkmcnt(0)")
    A("s_mov_b32 s86, s24\ns_mov_b32 s87, s25")
    srd(A, 88, 24, 131072, WS_FLAG)
    A(f"s_lshr_b32 s97, s2, 3\ns_and_b32 s97, s97, {nrep-1}\ns_add_u32 s97, s97, 1\ns_lshl_b32 s97, s97, 7")
    A("s_mov_b32 s85, 0")
    X = 32; RX = 64; RY = 80; Y = 96; RB = 128; RC = 144; Z = 96; SV = 160
    AX = 192; AY = 208
    c0 = -2.0 * 1.4426950408889634 * 0.7978845608028654
    c1 = c0 * 0.044715
    D = 4; ACC = 32
    def acc(n, x): return ACC + (n*4 + x)*4
    XR = 0; NX = 8; WR = 128; R = 8; PR = 160
    SLOT = 28672; PK = 4*SLOT
    def g1_vectors():
        A("s_and_b32 s27, s2, 1\ns_lshl_b32 s27, s27, 2\ns_lshr_b32 s28, s2, 3\ns_and_b32 s34, s28, 3\ns_add_u32 s27, s27, s34")
        A("s_bfe_u32 s34, s2, 0x20001\ns_lshl_b32 s34, s34, 3\ns_lshr_b32 s28, s28, 2\ns_add_u32 s28, s28, s34")
        A("v_lshlrev_b32 v3, 4, v31")
        A("s_movk_i32 s34, 4682\ns_movk_i32 s35, 7168")
        A("s_and_b32 s36, s28, 1\ns_lshl_b32 s36, s36, 1")
        for i in range(7):
            v = 4 + i
            A(f"v_add_u32 v20, {64*i}, v31")
            A("v_mul_u32_u24 v21, s34, v20\nv_lshrrev_b32 v21, 16, v21")
            A("v_mul_u32_u24 v22, 14, v21\nv_sub_u32 v22, v20, v22")
            A("v_add_u32 v22, s36, v22\nv_subrev_u32 v26, 14, v22\nv_min_u32 v22, v22, v26")
            A("v_bfe_u32 v19, v21, 2, 2\nv_lshlrev_b32 v19, 3, v19\nv_lshrrev_b32 v26, 4, v21\nv_lshl_add_u32 v19, v26, 2, v19\nv_and_b32 v26, 3, v21\nv_add_u32 v19, v19, v26")
            A(f"v_mul_u32_u24 v19, s35, v19\nv_lshl_add_u32 v{v}, v22, 4, v19")
            if (i % 4): A(f"v_subrev_u32 v{v}, {1024*(i%4)}, v{v}")
        A("v_lshrrev_b32 v20, 2, v31\nv_mul_u32_u24 v20, 224, v20\nv_and_b32 v21, 3, v31\nv_lshl_add_u32 v1, v21, 3, v20")
        A(f"v_add_u32 v2, {2*SLOT}, v1")
        A("v_lshrrev_b32 v20, 3, v31\nv_bfe_u32 v21, v31, 1, 2\nv_bfe_u32 v22, v31, 4, 2\nv_xor_b32 v21, v21, v22")
        A("v_and_b32 v22, 1, v31\nv_lshl_add_u32 v21, v21, 1, v22\nv_lshlrev_b32 v21, 4, v21\nv_lshl_add_u32 v11, v20, 11, v21")
        A(f"v_mov_b32 v28, {f2u(c0)}\nv_mov_b32 v29, {f2u(c0)}")
        A("v_and_b32 v30, 15, v31\nv_lshlrev_b32 v30, 4, v30\nv_lshrrev_b32 v20, 5, v31\nv_lshl_add_u32 v30, v20, 8, v30")
        A(f"v_lshrrev_b32 v20, 2, v31\nv_lshlrev_b32 v20, 7, v20\nv_and_b32 v21, 3, v31\nv_lshl_add_u32 v20, v21, 3, v20\nv_add_u32 v20, {PK}, v20")
        A("v_bfe_u32 v22, v31, 3, 2\nv_xor_b32 v22, s26, v22\nv_lshl_add_u32 v23, v22, 5, v20")
        A(f"v_lshrrev_b32 v20, 4, v31\nv_lshlrev_b32 v20, 3, v20\nv_bfe_u32 v22, v31, 2, 2\nv_add_u32 v20, v20, v22")
        for e in range(2):
            A(f"v_add_u32 v19, {4*e}, v20\nv_bfe_u32 v22, v19, 1, 2\nv_xor_b32 v22, s26, v22\nv_lshlrev_b32 v19, 7, v19\nv_lshl_add_u32 v19, v22, 5, v19\nv_lshl_add_u32 v19, v21, 3, v19\nv_add_u32 v{24+e}, {PK + 3*4096}, v19")
        A("v_bfe_u32 v20, v31, 3, 1\nv_lshlrev_b32 v20, 9, v20\nv_lshrrev_b32 v21, 4, v31\nv_lshl_add_u32 v20, v21, 7, v20\nv_and_b32 v21, 7, v31\nv_lshl_add_u32 v22, v21, 4, v20")
    def g1_scalars():
        A("s_and_b32 s27, s2, 1\ns_lshl_b32 s27, s27, 2\ns_lshr_b32 s28, s2, 3\ns_and_b32 s34, s28, 3\ns_add_u32 s27, s27, s34")
        A("s_bfe_u32 s34, s2, 0x20001\ns_lshl_b32 s34, s34, 3\ns_lshr_b32 s28, s28, 2\ns_add_u32 s28, s28, s34")
        A(f"s_lshr_b32 s35, s26, 1\ns_and_b32 s34, s26, 1\ns_mul_i32 s21, s35, {32*7168}\ns_mul_i32 s22, s35, 14336\ns_mul_i32 s36, s34, 7168\ns_add_u32 s22, s22, s36")
        A("s_cmp_eq_u32 s34, 0\ns_cselect_b32 s12, s4, s6\ns_cselect_b32 s13, s5, s7")
        A("s_mul_i32 s35, s28, 224\ns_add_u32 s12, s12, s35\ns_addc_u32 s13, s13, 0")
        A(f"s_sub_u32 s14, {1024*7168}, s35\ns_mov_b32 s15, 0x20000")
        A("s_lshr_b32 s61, s2, 3\ns_lshr_b32 s62, s61, 2\ns_add_u32 s61, s61, s62\ns_mul_i32 s61, s61, s60")
        for r in range(4):
            A(f"s_add_u32 s62, s61, {r}\ns_and_b32 s62, s62, 3\ns_mul_i32 s{76+r}, s62, {2*KP}\ns_mul_i32 s62, s62, {64*7168}\ns_add_u32 s{64+r}, s62, s21")
        A("s_mov_b32 s68, 0\ns_mov_b32 s69, 0\ns_mov_b32 s21, s64\ns_mov_b32 s20, s76")
    vm = VmTrack(); vt = VmTrack()
    def xload(t, x, emit=True):
        if emit:
            A(f"buffer_load_dwordx4 {ar(XR + (t%NX)*16 + x*4, 4)}, v22, s[8:11], s20 offen offset:{x*1024}")
            if x == 3:
                if t % 2 == 1:
                    r = ((t+1)//2) % 4
                    if r == 0: A(f"s_add_u32 s69, s69, {8*KP}")
                    A(f"s_add_u32 s20, s69, s{76+r}")
                else: A(f"s_add_u32 s20, s20, {KP}")
        else:
            vm.issue(("X", t)); vt.issue(("X", t))
    def dma(s, i, emit=True):
        if emit:
            if i % 4 == 0:
                A(f"s_add_u32 m0, s22, {(s%4)*SLOT + i*1024}")
                A("s_nop 0")
            A(f"buffer_load_dwordx4 v{4+i}, s[12:15], s21 offen offset:{(i%4)*1024} lds")
            if i == 6:
                r = (s+1) % 4
                if r == 0: A(f"s_add_u32 s68, s68, {4*64*7168}")
                A(f"s_add_u32 s21, s68, s{64+r}")
        else:
            vm.issue(("W", s)); vt.issue(("W", s))
    def both(fn, *a):
        fn(*a, True); fn(*a, False)
    def wpre():
        for s_ in range(NWPRE):
            for i in range(7): dma(s_, i, True)
    def ln_consts():
        A(f"v_lshlrev_b32 v15, 5, v16\nv_add_u32 v15, {LN_LDS}, v15\ns_lshl_b32 s34, s26, 3\nv_add_u32 v14, s34, v15")
        A(f"s_mov_b32 s38, 0x3f803f80\ns_mov_b32 s39, {f2u(1e-5)}\ns_mov_b32 s48, {f2u(1.0/1024)}")
        srd(A, 44, 86, XFB, O_XN)
    def tsum(i, store=None):
        for e in range(4*i, 4*i+4):
            A(f"v_lshlrev_b32 v{Y}, 16, v{RB+e}\nv_and_b32 v{Y+1}, 0xffff0000, v{RB+e}")
            A(f"v_lshlrev_b32 v{Y+2}, 16, v{RC+e}\nv_and_b32 v{Y+3}, 0xffff0000, v{RC+e}")
            A(f"v_pk_add_f32 {vr(Y,2)}, {vr(Y,2)}, {vr(Y+2,2)}")
            A(f"v_pk_add_f32 {vr(X+2*e,2)}, {vr(X+2*e,2)}, {vr(Y,2)}")
            A(f"v_cvt_pk_bf16_f32 v{RX+e}, v{X+2*e}, v{X+2*e+1}")
    def tloads():
        for i in range(4):
            A(f"buffer_load_dwordx4 {vr(RB+4*i,4)}, v12, s[8:11], s{29+i} offen")
            A(f"buffer_load_dwordx4 {vr(RC+4*i,4)}, v12, s[40:43], s{29+i} offen")
    def unstash_x():
        for i in range(16):
            A(f"v_accvgpr_read_b32 v{RX+i}, a{AX+i}")
        for i in range(16):
            A(f"v_lshlrev_b32 v{X+2*i}, 16, v{RX+i}\nv_and_b32 v{X+2*i+1}, 0xffff0000, v{RX+i}")
    ST("start")
    lane(A, 31)
    tg_map(A)
    srd(A, 8, 80, 4 << 20)
    for i in range(4): A(f"buffer_load_dwordx4 {vr(RX+4*i,4)}, v13, s[8:11], s33 offen offset:{128*i}")
    A(f"v_lshlrev_b32 v14, 2, v18\nv_add_u32 v14, v14, v17\nv_mul_u32_u24 v14, {2*YGS}, v14\nv_lshl_add_u32 v14, v16, 3, v14\nv_add_u32 v15, {YGS}, v14")
    A(f"s_mul_i32 s34, s26, {64*YGS}\ns_lshl_b32 s35, s3, 6\ns_add_u32 s34, s34, s35\ns_add_u32 s35, s34, {16*YGS}\ns_add_u32 s36, s34, {32*YGS}\ns_add_u32 s37, s34, {48*YGS}")
    srd(A, 40, 24, 256*YGS, WS_Y)
    for i in range(4):
        A(f"buffer_load_dwordx2 {vr(RY+4*i,2)}, v14, s[40:43], s{34+i} offen")
        A(f"buffer_load_dwordx2 {vr(RY+4*i+2,2)}, v15, s[40:43], s{34+i} offen")
    A(f"s_getpc_b64 s[50:51]\n{name}_pc:\ns_add_u32 s50, s50, {name}_stats-{name}_pc\ns_addc_u32 s51, s51, 0")
    g1_vectors()
    g1_scalars()
    if w0 == "early": wpre()
    ln_consts()
    A(f"s_waitcnt vmcnt({8 + (7*NWPRE if w0 == 'early' else 0)})")
    if w0 == "mid": wpre()
    for i in range(16):
        A(f"v_lshlrev_b32 v{X+2*i}, 16, v{RX+i}\nv_and_b32 v{X+2*i+1}, 0xffff0000, v{RX+i}")
    A(f"s_branch {name}_lngo")
    A(f"{name}_layer:")
    tg_map(A)
    A(f"s_lshr_b32 s34, s3, 4\ns_add_u32 s34, s34, {F_D}\ns_lshl_b32 s34, s34, 10")
    srd(A, 8, 24, XFB, O_T0)
    srd(A, 40, 24, XFB, O_T1)
    ST("lnb_prewait")
    wait(A, "s34")
    ST("lnb_postwait")
    tloads()
    g1_scalars()
    wpre()
    ln_consts()
    unstash_x()
    for i in range(16): A(f"v_accvgpr_read_b32 v{RY+i}, a{AY+i}")
    for i in range(4):
        A(f"s_waitcnt vmcnt({6-2*i + 7*NWPRE})")
        tsum(i)
    A(f"{name}_lngo:")
    ST("ln_xready")
    A("s_swappc_b64 s[54:55], s[50:51]")
    A(f"s_waitcnt vmcnt({7*NWPRE})")
    for i in range(16):
        A(f"v_lshlrev_b32 v{RB}, 16, v{RY+i}\nv_and_b32 v{RB+1}, 0xffff0000, v{RY+i}")
        A(f"v_pk_fma_f32 {vr(Z,2)}, {vr(X+2*i,2)}, {vr(SV+2,2)}, {vr(SV,2)} op_sel_hi:[1,0,0]")
        A(f"v_pk_fma_f32 {vr(X+2*i,2)}, {vr(Z,2)}, {vr(RB,2)}, {vr(X+2*i,2)}")
        A(f"v_cvt_pk_bf16_f32 v{RX+i}, v{X+2*i}, v{X+2*i+1}")
    A("v_add_u32 v14, 256, v14\nv_add_u32 v15, 256, v15")
    A("s_swappc_b64 s[54:55], s[50:51]")
    for i in range(16):
        A(f"v_pk_fma_f32 {vr(Z,2)}, {vr(X+2*i,2)}, {vr(SV+2,2)}, {vr(SV,2)} op_sel_hi:[1,0,0]")
        A(f"v_cvt_pk_bf16_f32 v{RB+i}, v{Z}, v{Z+1}")
        if i % 4 == 3: A(f"buffer_store_dwordx4 {vr(RB+i-3,4)}, v12, s[44:47], s{29+i//4} offen {sf}")
    ST("ln_stored")
    for i in range(16): A(f"v_accvgpr_write_b32 a{AX+i}, v{RX+i}\nv_accvgpr_write_b32 a{AY+i}, v{RY+i}")
    A(f"s_lshr_b32 s49, s3, 5\ns_add_u32 s49, s49, {F_A}\ns_lshl_b32 s49, s49, 10\ns_add_u32 s49, s49, s85")
    A(f"s_lshl_b32 s34, s27, 2\ns_add_u32 s34, s34, s26\ns_mul_i32 s34, s34, {32*KP}")
    A(f"s_add_u32 s8, s86, s34\ns_addc_u32 s9, s87, 0\ns_mov_b32 s10, {32*KP}\ns_mov_b32 s11, 0x20000")
    srd(A, 16, 86, 2048*3584*2, O_H)
    A(f"s_mov_b32 s36, {f2u(c1)}\ns_mov_b32 s37, {f2u(c1)}")
    A(f"s_lshl_b32 s29, s27, 1\ns_lshr_b32 s30, s26, 1\ns_add_u32 s29, s29, s30\ns_mul_i32 s29, s29, {112*8192}")
    A("s_and_b32 s30, s26, 1\ns_lshl_b32 s30, s30, 12\ns_add_u32 s29, s29, s30")
    A("s_mul_i32 s30, s28, 7\ns_and_b32 s31, s28, 1\ns_add_u32 s30, s30, s31\ns_lshl_b32 s30, s30, 12\ns_add_u32 s38, s29, s30")
    A("s_lshr_b32 s30, s28, 1\ns_mul_i32 s30, s30, 7\ns_add_u32 s30, s30, 3\ns_lshl_b32 s30, s30, 13\ns_lshl_b32 s31, s31, 9\ns_add_u32 s39, s29, s30\ns_add_u32 s39, s39, s31")
    A("s_add_u32 s61, s38, 8192\ns_add_u32 s62, s38, 16384")
    A(f"s_lshr_b32 s30, s2, 4\ns_mul_i32 s30, s30, {224*2048}\ns_and_b32 s31, s2, 15\ns_lshl_b32 s31, s31, 7\ns_add_u32 s30, s30, s31\ns_lshl_b32 s31, s26, 14\ns_add_u32 s30, s30, s31")
    A(f"s_add_u32 s56, s52, s30\ns_addc_u32 s57, s53, 0\ns_mul_i32 s58, s60, {6*65536 + 8*2048 - 15*128}\ns_mov_b32 s59, 0x20000")
    A(f"s_mov_b32 s70, 0\ns_lshl_b32 s71, s26, 10\ns_add_u32 s71, s71, {PK}\ns_add_u32 s72, s71, {7*4096}")
    srd(A, 40, 24, 3584*2048, WS_WDP)
    A("s_and_b32 s30, s2, 15\ns_mul_i32 s30, s30, 112\ns_lshr_b32 s31, s2, 4\ns_mul_i32 s31, s31, 7\ns_add_u32 s30, s30, s31\ns_lshl_b32 s30, s30, 2\ns_add_u32 s30, s30, s26\ns_lshl_b32 s44, s30, 10")
    A(f"s_bfe_u32 s45, s2, 0x30001\ns_lshl_b32 s45, s45, 1\ns_lshr_b32 s30, s2, 7\ns_add_u32 s45, s45, s30\ns_add_u32 s45, s45, {F_C}\ns_lshl_b32 s45, s45, 10")
    A(f"s_lshl_b32 s46, s27, 1\ns_lshr_b32 s30, s28, 4\ns_add_u32 s46, s46, s30\ns_add_u32 s46, s46, {F_B}\ns_lshl_b32 s46, s46, 10\ns_add_u32 s46, s46, s85")
    A(f"s_add_u32 s47, s27, {F_A}\ns_lshl_b32 s47, s47, 10\ns_add_u32 s47, s47, s85")
    signal(A, "s49", 32)
    ST("ln_signaled")
    def trread(q, half, s, st, n):
        slot = s % 4
        base = "v1" if slot < 2 else "v2"
        off = (slot % 2)*SLOT + st*14336 + (n & 1)*7168 + (n >> 1)*32 + half*3584
        A(f"ds_read_b64_tr_b16 {ar(WR + (q % R)*4 + half*2, 2)}, {base} offset:{off}")
    frags = [(s, st, n) for s in range(13) for st in range(2) for n in range(14)]
    NQ0 = len(frags)
    def pf(j, sss): return [(13 + ss//2, ss % 2, 2*j + m) for ss in sss for m in range(2)]
    frags += pf(0, [0]) + pf(1, [0]) + pf(0, [1,2,3]) + pf(1, [1,2,3]) + pf(2, [0,1,2,3]) + pf(0, [4,5]) + pf(1, [4,5]) + pf(2, [4,5])
    for j in range(3, 7): frags += pf(j, range(6))
    assert NWPRE in (2, 3)
    for q in range(D):
        for half in range(2): trread(q, half, *frags[q])
    wait(A, "s47")
    ST("g1_go")
    for t in range(2):
        for x in range(4): both(xload, t, x)
    def pack_dma(emit):
        if emit:
            A("s_min_u32 m0, s71, s72\ns_add_u32 s71, s71, 4096")
            A("buffer_load_dwordx4 v11, s[56:59], s70 offen lds\ns_add_u32 s70, s70, 65536")
        else:
            vm.issue("P"); vt.issue("P")
    def stage(s, emit, key, extra=None, bp=barpos):
        for st in range(2):
            t = s*2 + st
            for n in range(14):
                q = t*14 + n
                w = []
                if n == 0:
                    site = ("x", key, st)
                    if not emit: vm.wait(site, [("X", t)])
                    else: w.append(vm.need[site])
                isbar = (st*14 + n == bp)
                if isbar:
                    site = ("b", key)
                    if not emit: vm.wait(site, [("W", s+1)])
                    else: w.append(vm.need[site])
                if emit:
                    ww = [f"vmcnt({min(w)})"] if w and min(w) < 63 else []
                    ww.append(f"lgkmcnt({2*(D-1)})")
                    A("s_waitcnt " + " ".join(ww))
                    if isbar: A("s_barrier")
                for x in range(4):
                    if emit:
                        c = "0" if t == 0 else vr(acc(n,x),4)
                        A(f"v_mfma_f32_16x16x32_bf16 {vr(acc(n,x),4)}, {ar(WR+(q%R)*4,4)}, {ar(XR+(t%NX)*16+x*4,4)}, {c}")
                        if x < 2: trread(q + D, x, *frags[q + D])
                    if extra is not None:
                        if x >= 2:
                            for th in extra.get((st*14 + n, x), []): th(emit)
                    elif x == 2:
                        pos = st*14 + n
                        if pos in xpos:
                            k = xpos.index(pos); xload(2*s + LAX + k//4, k % 4, emit)
                        if pos in wpos: dma(s+2, wpos.index(pos), emit)
                        if pos == ppos: pack_dma(emit)
    def xl(t): return [(xload, t, x) for x in range(4)]
    seq = xl(2)
    if NWPRE == 2: seq += [(dma, 2, i) for i in range(7)]
    for t in range(3, 2 + LAX): seq += xl(t)
    slots = [(n, 2) for n in range(26)]
    extra = {}
    for k, (fn, a, b) in enumerate(seq):
        sl = slots[min(len(slots)-1, k * len(slots) // max(len(seq), 1))]
        extra.setdefault(sl, []).append(lambda emit, fn=fn, a=a, b=b: fn(a, b, emit))
    bp0 = -1 if NWPRE >= 2 else 28 - D - 1
    stage(0, False, "s0", extra, bp0)
    for it in range(3):
        for sp in range(4): stage(1 + it*4 + sp, False, ("L", sp))
    stage(0, True, "s0", extra, bp0)
    A("s_mov_b32 s35, 3")
    A(f".p2align 6\n{name}_g1loop:")
    for sp in range(4): stage(9 + sp, True, ("L", sp))
    A(f"s_sub_u32 s35, s35, 1\ns_cmp_lg_u32 s35, 0\ns_cbranch_scc1 {name}_g1loop")
    A(f"s_cmp_eq_u32 s60, 0\ns_cbranch_scc1 {name}_nopk2")
    for u in range(7):
        if u == 3: A(f"ds_read_b64_tr_b16 {ar(PR+4*u,2)}, v24\nds_read_b64_tr_b16 {ar(PR+4*u+2,2)}, v25")
        else: A(f"ds_read_b64_tr_b16 {ar(PR+4*u,2)}, v23 offset:{u*4096}\nds_read_b64_tr_b16 {ar(PR+4*u+2,2)}, v23 offset:{u*4096+2048}")
    for u in range(7):
        A(f"s_waitcnt lgkmcnt({12-2*u})")
        A(f"buffer_store_dwordx4 {ar(PR+4*u,4)}, v3, s[40:43], s44 offen {sf}")
        if u < 6: A("s_add_u32 s44, s44, 4096")
    A(f"{name}_nopk2:")
    xt = list(range(26 + LAX, 32))
    tl_loads = []
    while xt and xt[0] < 30: tl_loads += xl(xt.pop(0))
    tl_loads += [(dma, 15, i) for i in range(7)]
    while xt: tl_loads += xl(xt.pop(0))
    def finish(j, x):
        g = acc(2*j, x)
        if j % 2 == 1:
            return [f"buffer_store_dwordx4 {vr(acc(2*(j-1),x),4)}, v3, s[16:19], {('s38','s61','s62')[j//2]} offen offset:{x*1024} {sf}"]
        if j == 6:
            return [f"v_mov_b32 v{g+2}, v{g}\nv_mov_b32 v{g+3}, v{g+1}\ns_nop 1",
                    f"v_permlane16_swap_b32 v{g}, v{g+2}\nv_permlane16_swap_b32 v{g+1}, v{g+3}"]
        return []
    def dst(j, x): return acc(2*j, x) if j % 2 == 0 else acc(2*(j-1), x) + 2
    def epi_pk(j, x, T):
        g = acc(2*j, x); u = acc(2*j+1, x)
        L = []
        L.append(f"v_pk_mul_f32 {vr(T,2)}, {vr(g,2)}, {vr(g,2)}")
        L.append(f"v_pk_mul_f32 {vr(T+2,2)}, {vr(g+2,2)}, {vr(g+2,2)}")
        L.append(f"v_pk_fma_f32 {vr(T,2)}, {vr(T,2)}, s[36:37], v[28:29]")
        L.append(f"v_pk_fma_f32 {vr(T+2,2)}, {vr(T+2,2)}, s[36:37], v[28:29]")
        L.append(f"v_pk_mul_f32 {vr(T,2)}, {vr(T,2)}, {vr(g,2)}")
        L.append(f"v_pk_mul_f32 {vr(T+2,2)}, {vr(T+2,2)}, {vr(g+2,2)}")
        for e in range(4): L.append(f"v_exp_f32 v{T+e}, v{T+e}")
        L.append(f"v_pk_mul_f32 {vr(u,2)}, {vr(g,2)}, {vr(u,2)}")
        L.append(f"v_pk_add_f32 {vr(T,2)}, {vr(T,2)}, 1.0 op_sel_hi:[1,0]")
        L.append(f"v_pk_add_f32 {vr(T+2,2)}, {vr(T+2,2)}, 1.0 op_sel_hi:[1,0]")
        for e in range(4): L.append(f"v_rcp_f32 v{T+e}, v{T+e}")
        L.append(f"v_pk_mul_f32 {vr(u+2,2)}, {vr(g+2,2)}, {vr(u+2,2)}")
        L.append(f"v_pk_mul_f32 {vr(u,2)}, {vr(u,2)}, {vr(T,2)}")
        L.append(f"v_pk_mul_f32 {vr(u+2,2)}, {vr(u+2,2)}, {vr(T+2,2)}")
        d = dst(j, x)
        L.append(f"v_cvt_pk_bf16_f32 v{d}, v{u}, v{u+1}")
        L.append(f"v_cvt_pk_bf16_f32 v{d+1}, v{u+2}, v{u+3}")
        return L + finish(j, x)
    class Grp:
        def __init__(s, j, x, T):
            g = acc(2*j, x); u = acc(2*j+1, x); d = dst(j, x)
            s.j, s.x, s.T = j, x, T
            s.ops = []; fin = []
            for e in range(4):
                t = T + e; b = len(s.ops)
                s.ops += [["V", f"v_mul_f32 v{t}, v{g+e}, v{g+e}", []],
                          ["V", f"v_fma_f32 v{t}, v{t}, s36, v28", [b]],
                          ["V", f"v_mul_f32 v{t}, v{t}, v{g+e}", [b+1]],
                          ["T", f"v_exp_f32 v{t}, v{t}", [b+2]],
                          ["V", f"v_add_f32 v{t}, 1.0, v{t}", [b+3]],
                          ["T", f"v_rcp_f32 v{t}, v{t}", [b+4]],
                          ["V", f"v_mul_f32 v{u+e}, v{g+e}, v{u+e}", []],
                          ["V", f"v_mul_f32 v{u+e}, v{u+e}, v{t}", [b+5, b+6]]]
                fin.append(b+7)
            gdeps = [i for e in range(4) for i in (8*e+2, 8*e+6)]
            s.ops.append(["V", f"v_cvt_pk_bf16_f32 v{d}, v{u}, v{u+1}", fin[:2] + gdeps])
            s.ops.append(["V", f"v_cvt_pk_bf16_f32 v{d+1}, v{u+2}, v{u+3}", fin[2:] + gdeps])
            n = len(s.ops)
            for f in finish(j, x): s.ops.append(["F", f, [n-2, n-1]])
            s.done = [None]*len(s.ops)
        def ready(s, types, now):
            for i, (ty, tx, dp) in enumerate(s.ops):
                if s.done[i] is None and ty in types and all(s.done[k] is not None and s.done[k] + (2 if s.ops[k][0] == "T" else 1) <= now for k in dp):
                    return i
            return None
        def finished(s): return all(d is not None for d in s.done)
    tail = frags[NQ0:]
    last_pos = {}
    for p, (s_, st_, n_) in enumerate(tail): last_pos[n_ >> 1] = p
    done_at = {p: j for j, p in last_pos.items()}
    first_use = {}
    for p, (s_, st_, n_) in enumerate(tail): first_use.setdefault((s_-13)*2 + st_, p)
    bar14 = first_use[2] - D; bar15 = first_use[4] - D
    pending = []; active = []; temps = [12, 16]
    mi = 0; now = 0
    for p, (s_, st_, n_) in enumerate(tail):
        q = NQ0 + p
        ss = (s_-13)*2 + st_
        w = []; cands = []
        if first_use[ss] == p: vt.wait(("t", ss), [("X", 26 + ss)]); cands.append(vt.need[("t", ss)])
        if p == bar14: vt.wait("tb14", [("W", 14)]); cands.append(vt.need["tb14"])
        if p == bar15: vt.wait("tb15", [("W", 15)]); cands.append(vt.need["tb15"])
        if cands: w.append(f"vmcnt({min(cands)})")
        if p % 2 == 0:
            rem = len(tail) - p - 2
            w.append(f"lgkmcnt({min(2*(D-2), 2*rem)})")
        if w: A("s_waitcnt " + " ".join(w))
        if p == bar14 or p == bar15: A("s_barrier")
        if p == bar15:
            A(f"s_cmp_eq_u32 s60, 0\ns_cbranch_scc1 {name}_noc")
            post(A, ["s45"])
            A(f"{name}_noc:")
        for x in range(4):
            A(f"v_mfma_f32_16x16x32_bf16 {vr(acc(n_,x),4)}, {ar(WR+(q%R)*4,4)}, {ar(XR+((26+ss)%NX)*16+x*4,4)}, {vr(acc(n_,x),4)}")
            mi += 1; now += 1
            if x < 2 and p + D < len(tail): trread(q + D, x, *tail[p + D]); now += 1
            while pending and pending[0][0] <= mi and temps and len(active) < 2:
                _, j, xx = pending.pop(0); active.append(Grp(j, xx, temps.pop(0)))
            if x >= 2 and tl_loads and (x == 2 or p % 2 == 0):
                fn, a_, b_ = tl_loads.pop(0); both(fn, a_, b_)
            pat = slots_pat[x]
            for ch in {"V": ["V"], "T": ["TV"], "A": ["TV"], "": []}[pat]:
                for ty in ch:
                    hit = None
                    for g in active:
                        i = g.ready(ty + ("F" if ty == "V" else ""), now)
                        if i is not None: hit = (g, i); break
                    if hit:
                        g, i = hit; A(g.ops[i][1]); g.done[i] = now; now += 1
                        if "buffer_store" in g.ops[i][1]: vt.issue("S")
                        break
            for g in list(active):
                if g.finished(): active.remove(g); temps.append(g.T)
        if p in done_at:
            j = done_at[p]
            for x in range(4): pending.append((mi + 5 + x, j, x))
    A("s_nop 7")
    now += 8
    while active:
        prog = False
        for g in list(active):
            i = g.ready("VTF", now)
            if i is not None: A(g.ops[i][1]); g.done[i] = now; now += 1; prog = True
            if g.finished(): active.remove(g)
        if not prog: A("s_nop 0"); now += 1
    for k, (_, j, xx) in enumerate(pending):
        for ins in epi_pk(j, xx, 12 + 4*(k % 2)): A(ins)
    A("s_mov_b32 exec_lo, 0xffff\ns_mov_b32 exec_hi, 0xffff")
    for x in range(4):
        A(f"buffer_store_dwordx4 {vr(acc(12,x),4)}, v30, s[16:19], s39 offen offset:{x*1024} {sf}")
    A("s_mov_b64 exec, -1")
    ST("g1_stored")
    ACC2 = 64
    def acc2(x, j): return ACC2 + (x*2 + j)*4
    WRG = 0; NW = 8; HR = 64; R2 = 8; SLOT2 = 32768; D2 = g2D; LW = g2LW
    A("s_and_b32 s33, s2, 1")
    A("s_bfe_u32 s27, s2, 0x20001\ns_lshl_b32 s27, s27, 2\ns_bfe_u32 s29, s2, 0x20003\ns_add_u32 s27, s27, s29\ns_lshr_b32 s28, s2, 5")
    A("v_lshlrev_b32 v128, 4, v31\nv_add_u32 v129, 4096, v128")
    A(f"v_mov_b32 v130, v128\nv_add_u32 v131, {2*SLOT2}, v128")
    A(f"s_mul_i32 s30, s33, 56\ns_mul_i32 s29, s27, 112\ns_add_u32 s29, s29, s30\ns_add_u32 s29, s29, s26\ns_lshl_b32 s29, s29, 13\ns_add_u32 s29, s29, {O_H}")
    A(f"s_lshl_b32 s31, s28, 1\ns_lshr_b32 s32, s26, 1\ns_add_u32 s31, s31, s32\ns_mul_i32 s31, s31, 112\ns_add_u32 s31, s31, s30\ns_lshl_b32 s31, s31, 12")
    A(f"s_and_b32 s32, s26, 1\ns_lshl_b32 s32, s32, 11\ns_add_u32 s31, s31, s32\ns_add_u32 s31, s31, {WS_WDP}")
    A("s_lshl_b32 s22, s26, 13")
    A(f"s_sub_u32 s34, {56*8192}, s22\ns_sub_u32 s32, {56*4096}, s32")
    A("s_mov_b32 s20, 0\ns_mov_b32 s21, 0")
    A(f"s_add_u32 s8, s86, s29\ns_addc_u32 s9, s87, 0\ns_mov_b32 s10, s34\ns_mov_b32 s11, 0x20000")
    A(f"s_add_u32 s12, s24, s31\ns_addc_u32 s13, s25, 0\ns_mov_b32 s14, s32\ns_mov_b32 s15, 0x20000")
    A("v_and_b32 v12, 15, v31\nv_bfe_u32 v13, v31, 4, 1\nv_lshrrev_b32 v14, 5, v31\nv_lshl_add_u32 v13, v13, 1, v14")
    A("v_and_b32 v132, 7, v12\nv_lshlrev_b32 v132, 4, v132\nv_lshl_add_u32 v132, v13, 7, v132\nv_lshrrev_b32 v12, 3, v12\nv_lshl_add_u32 v132, v12, 9, v132\nv_add_u32 v133, %d, v132" % (32*KP))
    A("s_lshl_b32 s29, s27, 6\ns_lshl_b32 s30, s28, 2\ns_add_u32 s29, s29, s30\ns_add_u32 s29, s29, s26\ns_mul_i32 s36, s29, %d" % KP)
    A(f"s_add_u32 s23, s22, {2*SLOT2}\ns_lshl_b32 s37, s22, 1\ns_add_u32 s37, s37, {2*SLOT2}")
    A(f"s_and_b32 s47, s27, 14\ns_add_u32 s47, s47, s33\ns_add_u32 s47, s47, {F_B}\ns_lshl_b32 s47, s47, 10\ns_add_u32 s47, s47, s85")
    A(f"s_lshl_b32 s45, s28, 1\ns_add_u32 s45, s45, s33\ns_add_u32 s45, s45, {F_C}\ns_lshl_b32 s45, s45, 10")
    A(f"s_add_u32 s49, s27, {F_D}\ns_lshl_b32 s49, s49, 10\ns_add_u32 s49, s49, s85")
    A(f"s_mul_i32 s29, s33, {O_T1 - O_T0}\ns_add_u32 s29, s29, {O_T0}")
    A(f"s_add_u32 s16, s86, s29\ns_addc_u32 s17, s87, 0\ns_mov_b32 s18, {XFB}\ns_mov_b32 s19, 0x20000")
    signal(A, "s46", 16)
    ST("g1_signaled")
    A(f"s_cmp_eq_u32 s60, 0\ns_cbranch_scc1 {name}_nocw")
    wait(A, "s45", 16)
    A(f"{name}_nocw:")
    vm2 = VmTrack()
    def wload(t, j, emit):
        if emit:
            A(f"buffer_load_dwordx4 {ar(WRG + (t%NW)*8 + j*4, 4)}, v128, s[12:15], s21 offen offset:{j*1024}")
            if j == 1: A("s_add_u32 s21, s21, 4096")
        else: vm2.issue(("W", t))
    def hdma(s, i, emit, m0=None):
        if emit:
            if i % 4 == 0:
                A(m0(i)); A("s_nop 0")
            A(f"buffer_load_dwordx4 v{128 + i//4}, s[8:11], s20 offen offset:{(i%4)*1024} lds")
            if i == 7: A("s_add_u32 s20, s20, 32768")
        else: vm2.issue(("H", s))
    for t in range(LW):
        for j in range(2): wload(t, j, True); wload(t, j, False)
    for i in range(ACC2, ACC2 + 64): A(f"v_mov_b32 v{i}, 0")
    wait(A, "s47")
    ST("g2_go")
    for s_ in range(2):
        for i in range(8):
            hdma(s_, i, True, m0=lambda i: f"s_add_u32 m0, s22, {s_*SLOT2 + i*1024}"); hdma(s_, i, False)
    def hread(q):
        base = "v130" if q < 64 else "v131"
        A(f"ds_read_b128 {ar(HR + (q % R2)*4, 4)}, {base} offset:{(q % 64)*1024}")
    vm2.wait("pro", [("H", 0)])
    A(f"s_waitcnt vmcnt({vm2.need['pro']})\ns_barrier")
    for q in range(D2): hread(q)
    A("s_mov_b32 s35, 7")
    def body(it, emit):
        for sp in range(2):
            s = it*2 + sp
            for st in range(4):
                t = s*4 + st
                for x in range(8):
                    pos = st*8 + x; q = sp*32 + pos
                    w = []
                    if x == 0:
                        site = ("w", sp, st)
                        if emit: w.append(vm2.need[site])
                        else: vm2.wait(site, [("W", t)])
                    if pos == g2bar:
                        site = ("b", sp)
                        if emit: w.append(vm2.need[site])
                        else: vm2.wait(site, [("H", s+1)])
                    if emit:
                        ww = [f"vmcnt({min(w)})"] if w else []
                        if x % 2 == 0: ww.append(f"lgkmcnt({D2-2})")
                        if ww: A("s_waitcnt " + " ".join(ww))
                        if pos == g2bar: A("s_barrier")
                    for j in range(2):
                        if emit:
                            A(f"v_mfma_f32_16x16x32_bf16 {vr(acc2(x,j),4)}, {ar(WRG+(t%NW)*8+j*4,4)}, {ar(HR+(q%R2)*4,4)}, {vr(acc2(x,j),4)}")
                            if j == 0: hread(q + D2)
                        if j == 1:
                            if pos in hpos: hdma(s+2, hpos.index(pos), emit, m0=lambda i: f"s_add_u32 m0, s23, {sp*SLOT2 + i*1024}")
                            if x in (2, 5): wload(t + LW, (2, 5).index(x), emit)
        if emit:
            A("v_swap_b32 v130, v131\ns_sub_u32 s23, s37, s23")
    for it in range(7): body(it, False)
    A(f".p2align 6\n{name}_g2loop:")
    body(0, True)
    A(f"s_sub_u32 s35, s35, 1\ns_cmp_lg_u32 s35, 0\ns_cbranch_scc1 {name}_g2loop")
    ST("g2_loopend")
    for x in range(8):
        a = acc2(x, 0); r = 32 + 4*x
        for e in range(4): A(f"v_cvt_pk_bf16_f32 v{r+e}, v{a+2*e}, v{a+2*e+1}")
        if x >= 1:
            pr = r - 4
            A(f"v_permlane16_swap_b32 v{pr}, v{pr+2}\nv_permlane16_swap_b32 v{pr+1}, v{pr+3}")
            A(f"buffer_store_dwordx4 {vr(pr,4)}, v{132 + (x-1)//4}, s[16:19], s36 offen offset:{((x-1)%4)*1024} {sf}")
    A(f"s_nop 1\nv_permlane16_swap_b32 v60, v62\nv_permlane16_swap_b32 v61, v63")
    A(f"buffer_store_dwordx4 v[60:63], v133, s[16:19], s36 offen offset:3072 {sf}")
    A("s_waitcnt lgkmcnt(0)")
    signal(A, "s49", 16)
    ST("g2_signaled")
    A(f"s_cmp_eq_u32 s60, 0\ns_cbranch_scc1 {name}_fin")
    A(f"s_mov_b32 s60, 0\ns_mov_b32 s94, 32\ns_mov_b32 s85, 65536\ns_add_u32 s86, s86, {LSTRIDE}\ns_addc_u32 s87, s87, 0")
    A(f"s_branch {name}_layer")
    A(f"{name}_fin:")
    tg_map(A)
    A(f"s_lshr_b32 s34, s3, 4\ns_add_u32 s34, s34, {F_D}\ns_lshl_b32 s34, s34, 10\ns_add_u32 s34, s34, s85")
    srd(A, 8, 86, XFB, O_T0)
    srd(A, 40, 86, XFB, O_T1)
    srd(A, 16, 82, 4 << 20)
    unstash_x()
    wait(A, "s34")
    ST("fin_go")
    tloads()
    for i in range(4):
        A(f"s_waitcnt vmcnt({6 - 2*i + i})")
        tsum(i)
        A(f"buffer_store_dwordx4 {vr(RX+4*i,4)}, v13, s[16:19], s33 offen offset:{128*i}")
    if stamps:
        A("s_waitcnt vmcnt(0)")
        ST("end")
        srd(A, 8, 24, 1 << 20, WS_STAMP + (1 << 20))
        A("s_lshl_b32 s29, s2, 2\ns_add_u32 s29, s29, s26\ns_lshl_b32 s29, s29, 8\nv_lshlrev_b32 v1, 2, v31")
        A("buffer_store_dword v0, v1, s[8:11], s29 offen")
    A(f"{name}_end:\ns_endpgm")
    A(f"{name}_stats:")
    A("v_mov_b32 v160, 0\nv_mov_b32 v161, 0\nv_mov_b32 v162, 0\nv_mov_b32 v163, 0")
    for i in range(0, 16, 2):
        A(f"v_dot2c_f32_bf16 v160, s38, v{RX+i}\nv_dot2c_f32_bf16 v161, v{RX+i}, v{RX+i}")
        A(f"v_dot2c_f32_bf16 v162, s38, v{RX+i+1}\nv_dot2c_f32_bf16 v163, v{RX+i+1}, v{RX+i+1}")
    A("s_nop 2")
    A("v_pk_add_f32 v[160:161], v[160:161], v[162:163]")
    A("s_nop 1")
    A("v_add_f32_dpp v160, v160, v160 row_ror:8 row_mask:0xf bank_mask:0xf\nv_add_f32_dpp v161, v161, v161 row_ror:8 row_mask:0xf bank_mask:0xf")
    for sw in ("v_permlane16_swap_b32", "v_permlane32_swap_b32"):
        A("v_mov_b32 v162, v160\nv_mov_b32 v163, v161\ns_nop 1")
        A(f"{sw} v160, v162\n{sw} v161, v163")
        A("s_nop 0")
        A("v_pk_add_f32 v[160:161], v[160:161], v[162:163]")
    A(f"ds_write_b64 v14, v[160:161]\ns_waitcnt lgkmcnt(0)\ns_barrier")
    for k in range(2): A(f"ds_read_b128 {vr(Z+4*k,4)}, v15 offset:{16*k}")
    A("s_waitcnt lgkmcnt(0)")
    A(f"v_pk_add_f32 {vr(Z,2)}, {vr(Z,2)}, {vr(Z+2,2)}\nv_pk_add_f32 {vr(Z+4,2)}, {vr(Z+4,2)}, {vr(Z+6,2)}")
    A(f"v_pk_add_f32 v[160:161], {vr(Z,2)}, {vr(Z+4,2)}")
    A("v_mul_f32 v160, s48, v160\nv_mul_f32 v161, s48, v161\nv_fma_f32 v161, -v160, v160, v161\nv_max_f32 v161, 0, v161")
    round_bf16(A, 160); round_bf16(A, 161)
    A("v_add_f32 v161, s39, v161"); round_bf16(A, 161)
    A("v_sqrt_f32 v161, v161\ns_nop 0"); round_bf16(A, 161)
    A("v_rcp_f32 v162, v161\ns_nop 0\nv_mul_f32 v160, -v160, v162")
    A("s_setpc_b64 s[54:55]")
    gen_mega.names = ST.names
    return kernel_desc(name, 256 + 224, 256, 102)
```

```python
import sys
from asmlib import *
from gemm1 import *
from convv2 import gen_convv2, CONV_LDS
from mega import gen_mega, MEGA_LDS, WS_FLAG

HEADER = open("interleave_layers__ssm_conv_h3__geglu_ffn__prompt.s.ref").read().split("; Override launch")[0]

def build_all(stamps=False, mg={}, cv={}):
    launches = [HEADER.rstrip("\n"),
        f"; @launch kernel=conv_kernel grid=(256,1,1) block=(512,1,1) lds={CONV_LDS}",
        f"; @launch kernel=main_kernel grid=(256,1,1) block=(256,1,1) lds={MEGA_LDS}"]
    cvk = dict(codepf=("code_begin", "code_end", 5), wpre="none", zero=WS_FLAG); cvk.update(cv)
    def first(A):
        A("code_begin:")
        return gen_convv2(A, stamps=stamps, **cvk)
    def last(A):
        d = gen_mega(A, stamps=stamps, **mg)
        A("code_end:")
        return d
    return wrap(launches, [first, last])

if __name__ == "__main__":
    open("interleave_layers__ssm_conv_h3__geglu_ffn__prompt.s", "w").write(build_all())
```

```python
from asmlib import *
from gemm1 import f2u, wrap
WS_UT = 106 << 20
UTP = 4096 + 256
F_K = 128
NOBJ = 144
YGS = 16384 + 128

LSTRIDE = 48 << 20
O_XN, O_H, O_T0, O_T1 = 0, 5 << 20, 20 << 20, 26 << 20
WS_WDP = 32 << 20
WS_Y = 44 << 20
WS_Y = 100 << 20
WS_FLAG = 112 << 20
WS_STAMP = 120 << 20
F_A, F_B, F_D, F_C = 0, 8, 24, 40
F_Y1, F_Y2 = 56, 104
MEGA_LDS = 114688 + 32768
LN_LDS = 114688 + 7*4096

class Stamper:
    def __init__(s, A, on): s.A, s.on, s.n, s.names = A, on, 0, []
    def __call__(s, name):
        if not s.on: return
        s.A(f"s_memrealtime s[92:93]\ns_waitcnt lgkmcnt(0)\ns_add_u32 m0, s94, {s.n}\ns_nop 0\nv_writelane_b32 v0, s92, m0")
        s.names.append(name); s.n += 1

def lane(A, v):
    A(f"v_mbcnt_lo_u32_b32 v{v}, -1, 0\nv_mbcnt_hi_u32_b32 v{v}, -1, v{v}")

_uid = [0]
SLEEP = [1]
NREP = [4]
KPV = [4096]
def signal(A, off, tgt):
    _uid[0] += 1; u = _uid[0]
    A("s_waitcnt vmcnt(0)\ns_barrier")
    A(f"s_cmp_lg_u32 s26, 0\ns_cbranch_scc1 sig{u}")
    A("v_mov_b32 v26, 0\nv_mov_b32 v27, 1\ns_mov_b64 exec, 1")
    A(f"buffer_atomic_add v27, v26, s[88:91], {off} offen sc0 sc1")
    A(f"s_mov_b64 exec, -1\nv_lshl_add_u32 v26, v31, 7, 64\nv_add_u32 v26, 64, v26\ns_waitcnt vmcnt(0)\nv_readfirstlane_b32 s96, v27")
    A(f"s_cmp_lg_u32 s96, {tgt-1}\ns_cbranch_scc1 sig{u}")
    A(f"v_mov_b32 v27, 1\ns_mov_b64 exec, {(1<<NREP[0])-1}")
    A(f"buffer_store_dword v27, v26, s[88:91], {off} offen sc1")
    A(f"s_mov_b64 exec, -1\nsig{u}:")
def post(A, offs):
    _uid[0] += 1; u = _uid[0]
    A(f"s_cmp_lg_u32 s26, 0\ns_cbranch_scc1 sig{u}")
    A("v_mov_b32 v26, 0\nv_mov_b32 v27, 1\ns_mov_b64 exec, 1")
    for o in offs: A(f"buffer_atomic_add v27, v26, s[88:91], {o} offen sc1")
    A(f"s_mov_b64 exec, -1\nsig{u}:")
def wait(A, off, tgt=None):
    _uid[0] += 1; u = _uid[0]
    A(f"s_cmp_lg_u32 s26, 0\ns_cbranch_scc1 wt{u}")
    A(f"v_mov_b32 v26, {'s97' if tgt is None else 0}\ns_mov_b32 s95, 0x200000")
    A(f"wp{u}:\nbuffer_load_dword v27, v26, s[88:91], {off} offen sc1\ns_waitcnt vmcnt(0)\nv_readfirstlane_b32 s96, v27")
    A(f"s_cmp_ge_u32 s96, {1 if tgt is None else tgt}\ns_cbranch_scc1 wt{u}\ns_sleep {SLEEP[0]}\ns_sub_u32 s95, s95, 1\ns_cmp_lg_u32 s95, 0\ns_cbranch_scc1 wp{u}")
    A(f"wt{u}:\ns_barrier")

def round_bf16(A, v):
    A(f"v_cvt_pk_bf16_f32 v{v}, v{v}, v{v}\nv_and_b32 v{v}, 0xffff0000, v{v}")

def tg_map(A):
    A("s_lshr_b32 s3, s2, 4\ns_lshl_b32 s3, s3, 3\ns_and_b32 s29, s2, 7\ns_add_u32 s3, s3, s29\ns_lshl_b32 s3, s3, 1\ns_bfe_u32 s29, s2, 0x10003\ns_add_u32 s3, s3, s29")
    A("v_and_b32 v16, 7, v31\nv_bfe_u32 v17, v31, 3, 2\nv_lshrrev_b32 v18, 5, v31")
    KP = KPV[0]
    A(f"v_mul_u32_u24 v12, {KP}, v18\nv_lshl_add_u32 v12, v17, 7, v12\nv_lshl_add_u32 v12, v16, 4, v12")
    A(f"s_lshr_b32 s29, s3, 3\ns_lshl_b32 s29, s29, 2\ns_add_u32 s29, s29, s26\ns_mul_i32 s29, s29, {8*KP}")
    A("s_bfe_u32 s30, s3, 0x20001\ns_lshl_b32 s30, s30, 10\ns_add_u32 s29, s29, s30\ns_and_b32 s30, s3, 1\ns_lshl_b32 s30, s30, 9\ns_add_u32 s29, s29, s30")
    A(f"s_add_u32 s30, s29, {2*KP}\ns_add_u32 s31, s29, {4*KP}\ns_add_u32 s32, s29, {6*KP}")
    A("v_lshlrev_b32 v13, 11, v16\nv_lshl_add_u32 v13, v18, 6, v13\nv_lshl_add_u32 v13, v17, 4, v13")
    A("s_lshl_b32 s33, s3, 14\ns_lshl_b32 s34, s26, 9\ns_add_u32 s33, s33, s34")

def gen_mega(A, name="main_kernel", stamps=False, sf="sc1", LAX=4, NWPRE=2, w0="early", sleep=2, lstep=16, ssmpos=1, yng=32, KP=4096, nrep=4,
             wpos=(0,2,4,6,8,10,12), xpos=(15,17,19,20,22,24,25,27), barpos=14, ppos=13, slots_pat=("V","V","T","A"),
             g2D=6, g2P=8, g2T0=1.0, g2rate=1.0, snake=True, g2bar=16, hpos=(0,3,6,9,12,15,18,21)):
    ST = Stamper(A, stamps)
    SLEEP[0] = sleep
    NREP[0] = nrep
    KPV[0] = KP
    XFB = 1024*KP
    kernel_begin(A, name)
    A("s_cmp_ge_u32 s2, 256\ns_cbranch_scc1 %s_end" % name)
    A("s_load_dwordx2 s[80:81], s[0:1], 0")
    A("s_load_dwordx2 s[24:25], s[0:1], 96")
    A("s_load_dwordx4 s[4:7], s[0:1], 56")
    A("s_load_dwordx2 s[52:53], s[0:1], 72")
    A("s_load_dwordx2 s[82:83], s[0:1], 80")
    A("s_load_dwordx8 s[8:15], s[0:1], 8")
    A("s_load_dwordx2 s[16:17], s[0:1], 40")
    A("s_load_dwordx2 s[72:73], s[0:1], 88")
    A("v_lshrrev_b32 v1, 6, v0")
    A("s_mov_b32 s60, 1\ns_mov_b32 s94, 0")
    A("v_readfirstlane_b32 s26, v1")
    KL = 125440
    A("v_and_b32 v31, 63, v0\nv_lshrrev_b32 v19, 3, v0\nv_and_b32 v20, 7, v0\nv_lshlrev_b32 v3, 4, v31")
    A("s_and_b32 s27, s2, 15\ns_lshr_b32 s28, s2, 4\ns_lshl_b32 s29, s28, 18\ns_lshl_b32 s30, s27, 7\ns_add_u32 s29, s29, s30")
    A("v_lshlrev_b32 v248, 13, v19\nv_lshl_add_u32 v248, v20, 4, v248\nv_add_u32 v248, s29, v248")
    A("v_subrev_u32 v249, 6144, v248\nv_subrev_u32 v250, 2048, v248\nv_add_u32 v251, 4096, v248\nv_lshlrev_b32 v252, 6, v20\ns_lshl_b32 s31, s27, 9")
    A("v_sub_u32 v21, 31, v19\nv_lshrrev_b32 v26, 1, v21\nv_xor_b32 v26, v26, v20\nv_and_b32 v21, 1, v21\nv_lshlrev_b32 v21, 3, v21")
    A(f"v_lshl_add_u32 v253, v26, 4, v21\nv_lshl_add_u32 v253, v20, 11, v253\nv_add_u32 v253, {KL}, v253")
    A("s_waitcnt lgkmcnt(0)")
    A("s_mov_b32 s86, s24\ns_mov_b32 s87, s25")
    srd(A, 88, 24, NOBJ*1024, WS_FLAG)
    A("s_mov_b32 s74, 256\ns_mov_b32 s75, 0x20000")
    A(f"s_lshr_b32 s97, s2, 3\ns_and_b32 s97, s97, {nrep-1}\ns_add_u32 s97, s97, 1\ns_lshl_b32 s97, s97, 7")
    A("s_mov_b32 s85, 0")
    X = 32; RX = 64; RY = 80; Y = 96; RB = 128; RC = 144; Z = 96; SV = 160
    AX = 192; AY = 208
    c0 = -2.0 * 1.4426950408889634 * 0.7978845608028654
    c1 = c0 * 0.044715
    D = 4; ACC = 32
    def acc(n, x): return ACC + (n*4 + x)*4
    XR = 0; NX = 8; WR = 128; R = 8; PR = 160
    SLOT = 28672; PK = 4*SLOT
    def g1_vectors():
        A("s_and_b32 s27, s2, 1\ns_lshl_b32 s27, s27, 2\ns_lshr_b32 s28, s2, 3\ns_and_b32 s34, s28, 3\ns_add_u32 s27, s27, s34")
        A("s_bfe_u32 s34, s2, 0x20001\ns_lshl_b32 s34, s34, 3\ns_lshr_b32 s28, s28, 2\ns_add_u32 s28, s28, s34")
        A("v_lshlrev_b32 v3, 4, v31")
        A("s_movk_i32 s34, 4682\ns_movk_i32 s35, 7168")
        A("s_and_b32 s36, s28, 1\ns_lshl_b32 s36, s36, 1")
        for i in range(7):
            v = 4 + i
            A(f"v_add_u32 v20, {64*i}, v31")
            A("v_mul_u32_u24 v21, s34, v20\nv_lshrrev_b32 v21, 16, v21")
            A("v_mul_u32_u24 v22, 14, v21\nv_sub_u32 v22, v20, v22")
            A("v_add_u32 v22, s36, v22\nv_subrev_u32 v26, 14, v22\nv_min_u32 v22, v22, v26")
            A("v_bfe_u32 v19, v21, 2, 2\nv_lshlrev_b32 v19, 3, v19\nv_lshrrev_b32 v26, 4, v21\nv_lshl_add_u32 v19, v26, 2, v19\nv_and_b32 v26, 3, v21\nv_add_u32 v19, v19, v26")
            A(f"v_mul_u32_u24 v19, s35, v19\nv_lshl_add_u32 v{v}, v22, 4, v19")
            if (i % 4): A(f"v_subrev_u32 v{v}, {1024*(i%4)}, v{v}")
        A("v_lshrrev_b32 v20, 2, v31\nv_mul_u32_u24 v20, 224, v20\nv_and_b32 v21, 3, v31\nv_lshl_add_u32 v1, v21, 3, v20")
        A(f"v_add_u32 v2, {2*SLOT}, v1")
        A("v_lshrrev_b32 v20, 3, v31\nv_bfe_u32 v21, v31, 1, 2\nv_bfe_u32 v22, v31, 4, 2\nv_xor_b32 v21, v21, v22")
        A("v_and_b32 v22, 1, v31\nv_lshl_add_u32 v21, v21, 1, v22\nv_lshlrev_b32 v21, 4, v21\nv_lshl_add_u32 v11, v20, 11, v21")
        A(f"v_mov_b32 v28, {f2u(c0)}\nv_mov_b32 v29, {f2u(c0)}")
        A("v_and_b32 v30, 15, v31\nv_lshlrev_b32 v30, 4, v30\nv_lshrrev_b32 v20, 5, v31\nv_lshl_add_u32 v30, v20, 8, v30")
        A(f"v_lshrrev_b32 v20, 2, v31\nv_lshlrev_b32 v20, 7, v20\nv_and_b32 v21, 3, v31\nv_lshl_add_u32 v20, v21, 3, v20\nv_add_u32 v20, {PK}, v20")
        A("v_bfe_u32 v22, v31, 3, 2\nv_xor_b32 v22, s26, v22\nv_lshl_add_u32 v23, v22, 5, v20")
        A(f"v_lshrrev_b32 v20, 4, v31\nv_lshlrev_b32 v20, 3, v20\nv_bfe_u32 v22, v31, 2, 2\nv_add_u32 v20, v20, v22")
        for e in range(2):
            A(f"v_add_u32 v19, {4*e}, v20\nv_bfe_u32 v22, v19, 1, 2\nv_xor_b32 v22, s26, v22\nv_lshlrev_b32 v19, 7, v19\nv_lshl_add_u32 v19, v22, 5, v19\nv_lshl_add_u32 v19, v21, 3, v19\nv_add_u32 v{24+e}, {PK + 3*4096}, v19")
        A("v_bfe_u32 v20, v31, 3, 1\nv_lshlrev_b32 v20, 9, v20\nv_lshrrev_b32 v21, 4, v31\nv_lshl_add_u32 v20, v21, 7, v20\nv_and_b32 v21, 7, v31\nv_lshl_add_u32 v22, v21, 4, v20")
    def g1_scalars():
        A("s_and_b32 s27, s2, 1\ns_lshl_b32 s27, s27, 2\ns_lshr_b32 s28, s2, 3\ns_and_b32 s34, s28, 3\ns_add_u32 s27, s27, s34")
        A("s_bfe_u32 s34, s2, 0x20001\ns_lshl_b32 s34, s34, 3\ns_lshr_b32 s28, s28, 2\ns_add_u32 s28, s28, s34")
        A(f"s_lshr_b32 s35, s26, 1\ns_and_b32 s34, s26, 1\ns_mul_i32 s21, s35, {32*7168}\ns_mul_i32 s22, s35, 14336\ns_mul_i32 s36, s34, 7168\ns_add_u32 s22, s22, s36")
        A("s_cmp_eq_u32 s34, 0\ns_cselect_b32 s12, s4, s6\ns_cselect_b32 s13, s5, s7")
        A("s_mul_i32 s35, s28, 224\ns_add_u32 s12, s12, s35\ns_addc_u32 s13, s13, 0")
        A(f"s_sub_u32 s14, {1024*7168}, s35\ns_mov_b32 s15, 0x20000")
        A("s_lshr_b32 s61, s2, 3\ns_lshr_b32 s62, s61, 2\ns_add_u32 s61, s61, s62\ns_mul_i32 s61, s61, s60")
        for r in range(4):
            A(f"s_add_u32 s62, s61, {r}\ns_and_b32 s62, s62, 3\ns_mul_i32 s{76+r}, s62, {2*KP}\ns_mul_i32 s62, s62, {64*7168}\ns_add_u32 s{64+r}, s62, s21")
        A("s_mov_b32 s68, 0\ns_mov_b32 s69, 0\ns_mov_b32 s21, s64\ns_mov_b32 s20, s76")
    vm = VmTrack(); vt = VmTrack()
    def xload(t, x, emit=True):
        if emit:
            A(f"buffer_load_dwordx4 {ar(XR + (t%NX)*16 + x*4, 4)}, v22, s[8:11], s20 offen offset:{x*1024}")
            if x == 3:
                if t % 2 == 1:
                    r = ((t+1)//2) % 4
                    if r == 0: A(f"s_add_u32 s69, s69, {8*KP}")
                    A(f"s_add_u32 s20, s69, s{76+r}")
                else: A(f"s_add_u32 s20, s20, {KP}")
        else:
            vm.issue(("X", t)); vt.issue(("X", t))
    def dma(s, i, emit=True):
        if emit:
            if i % 4 == 0:
                A(f"s_add_u32 m0, s22, {(s%4)*SLOT + i*1024}")
                A("s_nop 0")
            A(f"buffer_load_dwordx4 v{4+i}, s[12:15], s21 offen offset:{(i%4)*1024} lds")
            if i == 6:
                r = (s+1) % 4
                if r == 0: A(f"s_add_u32 s68, s68, {4*64*7168}")
                A(f"s_add_u32 s21, s68, s{64+r}")
        else:
            vm.issue(("W", s)); vt.issue(("W", s))
    def both(fn, *a):
        fn(*a, True); fn(*a, False)
    def wpre():
        for s_ in range(NWPRE):
            for i in range(7): dma(s_, i, True)
    def ln_consts():
        A(f"v_lshlrev_b32 v15, 5, v16\nv_add_u32 v15, {LN_LDS}, v15\ns_lshl_b32 s34, s26, 3\nv_add_u32 v14, s34, v15")
        A(f"s_mov_b32 s38, 0x3f803f80\ns_mov_b32 s39, {f2u(1e-5)}\ns_mov_b32 s48, {f2u(1.0/1024)}")
        srd(A, 44, 86, XFB, O_XN)
    def tsum(i, store=None):
        for e in range(4*i, 4*i+4):
            A(f"v_lshlrev_b32 v{Y}, 16, v{RB+e}\nv_and_b32 v{Y+1}, 0xffff0000, v{RB+e}")
            A(f"v_lshlrev_b32 v{Y+2}, 16, v{RC+e}\nv_and_b32 v{Y+3}, 0xffff0000, v{RC+e}")
            A(f"v_pk_add_f32 {vr(Y,2)}, {vr(Y,2)}, {vr(Y+2,2)}")
            A(f"v_pk_add_f32 {vr(X+2*e,2)}, {vr(X+2*e,2)}, {vr(Y,2)}")
            A(f"v_cvt_pk_bf16_f32 v{RX+e}, v{X+2*e}, v{X+2*e+1}")
    def tloads():
        for i in range(4):
            A(f"buffer_load_dwordx4 {vr(RB+4*i,4)}, v12, s[8:11], s{29+i} offen")
            A(f"buffer_load_dwordx4 {vr(RC+4*i,4)}, v12, s[40:43], s{29+i} offen")
    def unstash_x():
        for i in range(16):
            A(f"v_accvgpr_read_b32 v{RX+i}, a{AX+i}")
        for i in range(16):
            A(f"v_lshlrev_b32 v{X+2*i}, 16, v{RX+i}\nv_and_b32 v{X+2*i+1}, 0xffff0000, v{RX+i}")
    CB = 57344; UP = 4608; KB = CB + 18432; KW = 8320; OB = 4160; YB = KB + 4*KW
    CA = 32; SK = 64; CT = 80; AD = 96; QR = 112
    ST("start")
    KR = 128; VR = 156; SR = 172; CF = 188; FF = 220; RR = 32; OO = 112
    A(f"s_lshl_b32 s33, s26, 8\ns_add_u32 s33, s33, s2\ns_cmp_ge_u32 s33, {NOBJ//8}\ns_cbranch_scc1 {name}_nz")
    A("s_lshl_b32 s34, s33, 13\nv_lshlrev_b32 v26, 7, v31\nv_mov_b32 v27, 0\nbuffer_store_dword v27, v26, s[88:91], s34 offen sc1")
    A(f"{name}_nz:")
    srd(A, 32, 8, 4 << 20); srd(A, 36, 10, 4 << 20); srd(A, 40, 12, 8192)
    kaddr = [("v249", 0), ("v249", 2048), ("v250", 0), ("v248", 0), ("v248", 2048), ("v251", 0), ("v251", 2048)]
    for j in (3, 4, 5, 6): A(f"buffer_load_dwordx4 {vr(KR+4*j,4)}, {kaddr[j][0]}, s[32:35], 0 offen offset:{kaddr[j][1]}")
    for j in range(4): A(f"buffer_load_dwordx4 {vr(VR+4*j,4)}, {kaddr[3+j][0]}, s[36:39], 0 offen offset:{kaddr[3+j][1]}")
    for j in (0, 1, 2): A(f"buffer_load_dwordx4 {vr(KR+4*j,4)}, {kaddr[j][0]}, s[32:35], 0 offen offset:{kaddr[j][1]}")
    for j in range(4): A(f"buffer_load_dwordx4 {vr(SR+4*j,4)}, v252, s[40:43], s31 offen offset:{16*j}")
    srd(A, 56, 24, 1024*UTP, WS_UT)
    A(f"s_lshl_b32 s70, s27, 2\ns_add_u32 s70, s70, s26\ns_mul_i32 s70, s70, {16*UTP}\ns_lshl_b32 s34, s28, 8\ns_sub_u32 s34, 3840, s34\ns_add_u32 s70, s70, s34")
    A(f"s_add_u32 s98, s27, {F_K}\ns_lshl_b32 s98, s98, 10\ns_add_u32 s99, s28, {F_K}\ns_lshl_b32 s99, s99, 10")
    A("s_lshl_b32 s27, s2, 2\ns_add_u32 s27, s27, s26")
    A("s_lshl_b32 s28, s27, 12\ns_add_u32 s32, s14, s28\ns_addc_u32 s33, s15, 0\ns_mov_b32 s34, 4096\ns_mov_b32 s35, 0x20000")
    A("s_mov_b32 s48, s32\ns_mov_b32 s49, s33\ns_mov_b32 s50, 4096\ns_mov_b32 s51, 0x20000")
    def ssm_loads():
        for i in range(4): A(f"buffer_load_dwordx4 {vr(SK+4*i,4)}, v3, s[48:51], 0 offen offset:{1024*i}")
    if ssmpos == 0: ssm_loads()
    A(f"s_getpc_b64 s[36:37]\n{name}_pc0:\ns_sub_u32 s36, s36, {name}_pc0-{name}\ns_subb_u32 s37, s37, 0\ns_mov_b32 s38, {name}_codeend-{name}\ns_mov_b32 s39, 0x20000")
    A("s_lshr_b32 s29, s2, 3\ns_lshl_b32 s29, s29, 2\ns_add_u32 s29, s29, s26\ns_lshl_b32 s29, s29, 9\nv_lshlrev_b32 v26, 7, v31")
    A("s_mov_b64 exec, 15\nbuffer_load_dword a255, v26, s[36:39], s29 offen\ns_mov_b64 exec, -1")
    A("v_lshrrev_b32 v19, 4, v31\nv_and_b32 v20, 15, v31\ns_lshl_b32 s29, s26, 1")
    A(f"v_xor_b32 v21, s29, v20\nv_lshlrev_b32 v21, 4, v21\nv_lshl_add_u32 v21, v19, 8, v21\ns_lshl_b32 s29, s26, 12\ns_add_u32 s29, s29, {KL}\nv_add_u32 v254, s29, v21\nv_xor_b32 v255, 16, v254")
    A(f"v_mul_u32_u24 v19, {UTP}, v19\nv_lshl_add_u32 v248, v20, 4, v19")
    A(f"s_mul_i32 s28, s27, {UTP}\ns_add_u32 s28, s28, {WS_UT}\ns_add_u32 s40, s24, s28\ns_addc_u32 s41, s25, 0\ns_mov_b32 s42, 4096\ns_mov_b32 s43, 0x20000")
    A(f"s_mul_i32 s29, s26, {UP}\ns_add_u32 s29, s29, {CB}\ns_mov_b32 s71, s29\ns_mul_i32 s30, s26, {KW}\ns_add_u32 s30, s30, {KB}")
    A("s_lshl_b32 s28, s2, 3\ns_add_u32 s16, s16, s28\ns_addc_u32 s17, s17, 0\ns_load_dwordx2 s[44:45], s[16:17], 0")
    A("v_and_b32 v16, 15, v31\nv_lshrrev_b32 v17, 4, v31")
    A("v_lshlrev_b32 v100, 4, v17\nv_lshlrev_b32 v18, 5, v16\nv_sub_u32 v100, v100, v18\nv_add_u32 v100, 480, v100\nv_add_u32 v100, s29, v100")
    A("v_add_u32 v101, s30, v3")
    A(f"v_and_b32 v18, 1, v16\nv_mul_u32_u24 v18, {OB+2}, v18\nv_lshl_add_u32 v18, v16, 1, v18\nv_lshl_add_u32 v18, v17, 4, v18\nv_add_u32 v102, s30, v18")
    for k in range(1, 4): A(f"v_add_u32 v{102+k}, {1024*k}, v102")
    A("v_mov_b32 v110, 0\nv_mov_b32 v111, 0\nv_lshlrev_b32 v18, 3, v31\nv_add_u32 v19, s29, v18")
    A("ds_write_b64 v19, v[110:111] offset:4096")
    A(f"v_add_u32 v19, s30, v18\ns_mov_b64 exec, 15\nds_write_b64 v19, v[110:111]\nds_write_b64 v19, v[110:111] offset:{OB}\ns_mov_b64 exec, -1")
    A(f"s_lshl_b32 s28, s26, 12\ns_add_u32 s28, s28, {YB}\nv_lshlrev_b32 v107, 5, v16\nv_lshl_add_u32 v107, v17, 3, v107\nv_add_u32 v107, s28, v107")
    A(f"s_lshl_b32 s28, s26, 8\ns_add_u32 s28, s28, {YB}\nv_lshl_add_u32 v108, v31, 2, s28\ns_lshl_b32 s28, s26, 10\nv_add_u32 v109, s28, v3")
    A("v_lshlrev_b32 v18, 3, v17\nv_add_u32 v18, v18, v16\nv_sub_u32 v110, 15, v18")
    tg_map(A)
    srd(A, 16, 80, 4 << 20)
    g1_vectors()
    g1_scalars()
    late = [lambda i=i: A(f"buffer_load_dwordx4 {vr(QR+4*i,4)}, v13, s[16:19], s33 offen offset:{128*i}") for i in range(4)]
    late += [lambda s_=s_, i=i: dma(s_, i, True) for s_ in range(NWPRE) for i in range(7)]
    A("s_waitcnt lgkmcnt(0)")
    A("s_cmp_lt_u32 s26, 2\ns_cselect_b32 s44, s44, s45\ns_and_b32 s45, s26, 1\ns_lshl_b32 s45, s45, 4\ns_lshr_b32 s44, s44, s45\ns_and_b32 s44, s44, 0xffff")
    A("v_and_b32 v111, 1, v110\nv_lshlrev_b32 v111, 4, v111\nv_lshlrev_b32 v111, v111, s44\nv_ashrrev_i32 v110, 1, v110")
    for j in range(4):
        A(f"v_cmp_eq_u32 vcc, {j}, v110\ns_nop 1\nv_cndmask_b32 v{AD+j}, 0, v111, vcc")
    if ssmpos == 1: ssm_loads()
    A(f"s_waitcnt vmcnt({5 if ssmpos < 2 else 1})")
    ST("cv_kv")
    if ssmpos == 2: ssm_loads()
    A(f"s_lshl_b32 s34, s26, 8\ns_add_u32 s34, s34, s2\ns_cmp_ge_u32 s34, {NOBJ//8}\ns_cbranch_scc1 {name}_nz2")
    A("v_mov_b32 v26, 0\nv_mov_b32 v27, 1\ns_mov_b64 exec, 1\nbuffer_atomic_add v27, v26, s[72:75], 0 offen sc1\ns_mov_b64 exec, -1")
    A(f"{name}_nz2:")
    for c in range(8):
        for i in range(4):
            src = SR + 2*c + (i >> 1)
            A(f"v_lshlrev_b32 v{CF+i*8+c}, 16, v{src}" if i % 2 == 0 else f"v_and_b32 v{CF+i*8+c}, 0xffff0000, v{src}")
    for dh in range(2):
        for j in range(7):
            for d in range(2):
                A(f"v_lshlrev_b32 v{FF+4*j+2*d}, 16, v{KR+4*j+2*dh+d}\nv_and_b32 v{FF+4*j+2*d+1}, 0xffff0000, v{KR+4*j+2*dh+d}")
        for r in range(4):
            for d in range(2):
                dd = 2*dh + d
                dstp = vr(RR+8*r+2*dd, 2)
                A(f"v_pk_mul_f32 {dstp}, {vr(FF+4*(3+r)+2*d,2)}, {vr(CF+2*dd,2)}")
                for i in range(1, 4):
                    A(f"v_pk_fma_f32 {dstp}, {vr(FF+4*(3+r-i)+2*d,2)}, {vr(CF+i*8+2*dd,2)}, {dstp}")
                A(f"v_lshlrev_b32 v26, 16, v{VR+4*r+dd}\nv_and_b32 v27, 0xffff0000, v{VR+4*r+dd}")
                A(f"v_pk_mul_f32 {dstp}, {dstp}, v[26:27]")
        for c in range(4*dh, 4*dh + 4):
            A(f"v_cvt_pk_bf16_f32 v{OO+2*c}, v{RR+24+c}, v{RR+16+c}\nv_cvt_pk_bf16_f32 v{OO+2*c+1}, v{RR+8+c}, v{RR+c}")
            A(f"ds_write_b64 v253, {vr(OO+2*c,2)} offset:{256*c}")
    A("s_waitcnt lgkmcnt(0)\ns_barrier")
    for i in range(4):
        A(f"ds_read_b128 {vr(KR+4*i,4)}, {'v254' if i < 2 else 'v255'} offset:{1024*i}")
    for i in range(4):
        A(f"s_waitcnt lgkmcnt({3-i})")
        A(f"buffer_store_dwordx4 {vr(KR+4*i,4)}, v248, s[56:59], s70 offen {sf}")
        if i < 3: A(f"s_add_u32 s70, s70, {4*UTP}")
    for i in range(32): A(f"v_mov_b32 v{CA+i}, 0")
    A(f"s_waitcnt vmcnt(4)")
    ST("cv_ssm")
    for i in range(4):
        A(f"ds_write_b128 v101, {vr(SK+4*i,4)} offset:{OB+32+1024*i}")
    for i in range(4):
        t = CT + 8*(i % 2)
        if i < 3: A(f"v_readfirstlane_b32 s34, v{SK+4*(i+1)}\ns_nop 1\nv_mov_b32 v{t+4}, s34")
        else: A(f"v_mov_b32 v{t+4}, 0")
        A(f"s_nop 1\nv_mov_b32_dpp v{t+4}, v{SK+4*i} wave_shl:1 row_mask:0xf bank_mask:0xf")
        for j in range(4):
            hi = f"v{SK+4*i+j+1}" if j < 3 else f"v{t+4}"
            A(f"v_alignbyte_b32 v{t+j}, {hi}, v{SK+4*i+j}, 2")
        A(f"ds_write_b128 v101, {vr(t,4)} offset:{32+1024*i}")
    A(f"v_lshlrev_b32 v{CT+7}, 16, v{SK}\ns_mov_b64 exec, 1\nds_write_b32 v101, v{CT+7} offset:28\ns_mov_b64 exec, -1")
    A(f"s_cmp_lg_u32 s26, 0\ns_cbranch_scc1 {name}_zok\nv_mov_b32 v26, 0\ns_mov_b32 s95, 0x200000")
    A(f"{name}_zl:\nbuffer_load_dword v27, v26, s[72:75], 0 offen sc1\ns_waitcnt vmcnt(0)\nv_readfirstlane_b32 s96, v27")
    A(f"s_cmp_ge_u32 s96, {NOBJ//8}\ns_cbranch_scc1 {name}_zok\ns_sleep {sleep}\ns_sub_u32 s95, s95, 1\ns_cmp_lg_u32 s95, 0\ns_cbranch_scc1 {name}_zl\n{name}_zok:")
    signal(A, "s98", 16)
    ST("cv_usig")
    wait(A, "s99")
    ST("cv_ugo")
    A("s_mov_b32 m0, s71\ns_nop 0")
    for i in range(4): A(f"buffer_load_dwordx4 v3, s[40:43], 0 offen offset:{1024*i} lds")
    A(f"s_waitcnt vmcnt(0) lgkmcnt(0)")
    def creads(r):
        pb = (r % 2)*64
        L = []
        for k in range(8):
            m = 8*k + r; o = (m % 16)*16
            L.append(f"ds_read_b128 {ar(pb + 32 + 4*k, 4)}, v100 offset:{3584 - 64*(8*k - r)}")
            L.append(f"ds_read2_b32 {ar(pb + 4*k, 2)}, v{102 + m//16} offset0:{o} offset1:{o+1}")
            L.append(f"ds_read2_b32 {ar(pb + 4*k + 2, 2)}, v{102 + m//16} offset0:{o+2} offset1:{o+3}")
        return L
    for ins in creads(0): A(ins)
    cnt = 0
    for r in range(8):
        A("s_waitcnt lgkmcnt(0)")
        pb = (r % 2)*64
        nxt = creads(r+1) if r < 7 else []
        seq = [(nb, ar(pb + 4*(nb-q1), 4), q1) for q1 in range(8) for nb in range(q1, 8)]
        if r == 0: seq += [(q1, vr(AD, 4), q1) for q1 in range(8)]
        for nb, a, q1 in seq:
            A(f"v_mfma_f32_16x16x32_bf16 {vr(CA+4*nb,4)}, {a}, {ar(pb + 32 + 4*q1, 4)}, {vr(CA+4*nb,4)}")
            if nxt: A(nxt.pop(0))
            cnt += 1
            if late and cnt % lstep == 0: late.pop(0)()
    assert not late
    ST("cv_mfma")
    A(f"s_mul_i32 s34, s2, {YGS}\ns_add_u32 s34, s34, {WS_Y}\ns_add_u32 s40, s24, s34\ns_addc_u32 s41, s25, 0\ns_mov_b32 s42, 16384\ns_mov_b32 s43, 0x20000")
    A("s_mov_b32 s34, 0x05040100\ns_mov_b32 s35, 0x07060302\ns_nop 4")
    for nb in range(8):
        A(f"v_cvt_pk_bf16_f32 v{CT+2*nb}, v{CA+4*nb}, v{CA+4*nb+1}\nv_cvt_pk_bf16_f32 v{CT+2*nb+1}, v{CA+4*nb+2}, v{CA+4*nb+3}")
        A(f"ds_write_b64 v107, {vr(CT+2*nb,2)} offset:{512*nb}")
    A("s_waitcnt lgkmcnt(0)\ns_barrier")
    for c in range(4):
        for ch in range(4): A(f"ds_read_b32 v{SK+4*c+ch}, v108 offset:{ch*4096 + 1024*c}")
    for c in range(4):
        A(f"s_waitcnt lgkmcnt({12-4*c})")
        o = CA + 4*c; b = SK + 4*c
        A(f"v_perm_b32 v{o}, v{b+1}, v{b}, s34\nv_perm_b32 v{o+1}, v{b+3}, v{b+2}, s34")
        A(f"v_perm_b32 v{o+2}, v{b+1}, v{b}, s35\nv_perm_b32 v{o+3}, v{b+3}, v{b+2}, s35")
        A(f"s_mov_b32 s36, {4096*c}\nbuffer_store_dwordx4 {vr(o,4)}, v109, s[40:43], s36 offen {sf}")
    ST("cv_stored")
    A(f"s_waitcnt vmcnt({7*NWPRE + 4})")
    for i in range(16): A(f"v_mov_b32 v{RX+i}, v{QR+i}")
    A(f"s_getpc_b64 s[50:51]\n{name}_pc:\ns_add_u32 s50, s50, {name}_stats-{name}_pc\ns_addc_u32 s51, s51, 0")
    ln_consts()
    A("s_swappc_b64 s[54:55], s[50:51]")
    A(f"v_lshlrev_b32 v19, 2, v18\nv_add_u32 v19, v19, v17\nv_mul_u32_u24 v19, {2*YGS}, v19\nv_lshl_add_u32 v19, v16, 3, v19\nv_add_u32 v20, {YGS}, v19")
    A(f"s_mul_i32 s34, s26, {64*YGS}\ns_lshl_b32 s35, s3, 6\ns_add_u32 s34, s34, s35\ns_add_u32 s35, s34, {16*YGS}\ns_add_u32 s36, s34, {32*YGS}\ns_add_u32 s37, s34, {48*YGS}")
    srd(A, 40, 24, 256*YGS, WS_Y)
    A("s_waitcnt vmcnt(0)\ns_barrier")
    ST("y_drained")
    A(f"s_cmp_lg_u32 s26, 0\ns_cbranch_scc1 {name}_yw")
    A(f"s_and_b32 s98, s2, {yng-1}\ns_lshl_b32 s98, s98, 7\ns_add_u32 s98, s98, {F_Y1 << 10}\ns_mov_b32 s99, {(F_Y1+4) << 10}")
    A("v_mov_b32 v26, 0\nv_mov_b32 v27, 1\ns_mov_b64 exec, 1")
    A("buffer_atomic_add v27, v26, s[88:91], s98 offen sc0 sc1")
    A("s_waitcnt vmcnt(0)\nv_readfirstlane_b32 s96, v27")
    A(f"s_cmp_lg_u32 s96, {256//yng - 1}\ns_cbranch_scc1 {name}_yp")
    A("v_mov_b32 v27, 1\nbuffer_atomic_add v27, v26, s[88:91], s99 offen sc0 sc1")
    A("s_waitcnt vmcnt(0)\nv_readfirstlane_b32 s96, v27")
    A(f"s_cmp_lg_u32 s96, {yng - 1}\ns_cbranch_scc1 {name}_yp")
    A(f"s_mov_b64 exec, 0xffff\nv_mov_b32 v27, 1\nv_lshlrev_b32 v26, 10, v31\ns_mov_b32 s99, {F_Y2 << 10}\nbuffer_store_dword v27, v26, s[88:91], s99 offen sc1")
    A(f"{name}_yp:")
    A(f"s_mov_b64 exec, -1\ns_lshr_b32 s98, s2, 4\ns_add_u32 s98, s98, {F_Y2}\ns_lshl_b32 s98, s98, 10\nv_mov_b32 v26, 0\ns_mov_b32 s95, 0x200000")
    A(f"{name}_yl:\nbuffer_load_dword v27, v26, s[88:91], s98 offen sc1\ns_waitcnt vmcnt(0)\nv_readfirstlane_b32 s96, v27\ns_cmp_eq_u32 s96, 1")
    A(f"s_cbranch_scc1 {name}_yd\ns_sleep {sleep}\ns_sub_u32 s95, s95, 1\ns_cmp_lg_u32 s95, 0\ns_cbranch_scc1 {name}_yl")
    A(f"{name}_yd:\ns_mov_b64 exec, -1\n{name}_yw:")
    for i in range(16):
        A(f"v_lshlrev_b32 v{X+2*i}, 16, v{RX+i}\nv_and_b32 v{X+2*i+1}, 0xffff0000, v{RX+i}")
    A("s_barrier")
    ST("y_go")
    for i in range(4):
        A(f"buffer_load_dwordx2 {vr(RY+4*i,2)}, v19, s[40:43], s{34+i} offen")
        A(f"buffer_load_dwordx2 {vr(RY+4*i+2,2)}, v20, s[40:43], s{34+i} offen")
    A("s_waitcnt vmcnt(0)")
    A(f"s_branch {name}_lngo2")
    A(f"{name}_layer:")
    tg_map(A)
    A(f"s_lshr_b32 s34, s3, 4\ns_add_u32 s34, s34, {F_D}\ns_lshl_b32 s34, s34, 10")
    srd(A, 8, 24, XFB, O_T0)
    srd(A, 40, 24, XFB, O_T1)
    ST("lnb_prewait")
    wait(A, "s34")
    ST("lnb_postwait")
    tloads()
    g1_scalars()
    wpre()
    ln_consts()
    unstash_x()
    for i in range(16): A(f"v_accvgpr_read_b32 v{RY+i}, a{AY+i}")
    for i in range(4):
        A(f"s_waitcnt vmcnt({6-2*i + 7*NWPRE})")
        tsum(i)
    A(f"{name}_lngo:")
    ST("ln_xready")
    A("s_swappc_b64 s[54:55], s[50:51]")
    A(f"{name}_lngo2:")
    ST("ln_go2")
    for i in range(16):
        A(f"v_lshlrev_b32 v{RB}, 16, v{RY+i}\nv_and_b32 v{RB+1}, 0xffff0000, v{RY+i}")
        A(f"v_pk_fma_f32 {vr(Z,2)}, {vr(X+2*i,2)}, {vr(SV+2,2)}, {vr(SV,2)} op_sel_hi:[1,0,0]")
        A(f"v_pk_fma_f32 {vr(X+2*i,2)}, {vr(Z,2)}, {vr(RB,2)}, {vr(X+2*i,2)}")
        A(f"v_cvt_pk_bf16_f32 v{RX+i}, v{X+2*i}, v{X+2*i+1}")
    A("v_add_u32 v14, 256, v14\nv_add_u32 v15, 256, v15")
    A("s_swappc_b64 s[54:55], s[50:51]")
    for i in range(16):
        A(f"v_pk_fma_f32 {vr(Z,2)}, {vr(X+2*i,2)}, {vr(SV+2,2)}, {vr(SV,2)} op_sel_hi:[1,0,0]")
        A(f"v_cvt_pk_bf16_f32 v{RB+i}, v{Z}, v{Z+1}")
        if i % 4 == 3: A(f"buffer_store_dwordx4 {vr(RB+i-3,4)}, v12, s[44:47], s{29+i//4} offen {sf}")
    ST("ln_stored")
    for i in range(16): A(f"v_accvgpr_write_b32 a{AX+i}, v{RX+i}\nv_accvgpr_write_b32 a{AY+i}, v{RY+i}")
    A(f"s_lshr_b32 s49, s3, 5\ns_add_u32 s49, s49, {F_A}\ns_lshl_b32 s49, s49, 10\ns_add_u32 s49, s49, s85")
    A(f"s_lshl_b32 s34, s27, 2\ns_add_u32 s34, s34, s26\ns_mul_i32 s34, s34, {32*KP}")
    A(f"s_add_u32 s8, s86, s34\ns_addc_u32 s9, s87, 0\ns_mov_b32 s10, {32*KP}\ns_mov_b32 s11, 0x20000")
    srd(A, 16, 86, 2048*3584*2, O_H)
    A(f"s_mov_b32 s36, {f2u(c1)}\ns_mov_b32 s37, {f2u(c1)}")
    A(f"s_lshl_b32 s29, s27, 1\ns_lshr_b32 s30, s26, 1\ns_add_u32 s29, s29, s30\ns_mul_i32 s29, s29, {112*8192}")
    A("s_and_b32 s30, s26, 1\ns_lshl_b32 s30, s30, 12\ns_add_u32 s29, s29, s30")
    A("s_mul_i32 s30, s28, 7\ns_and_b32 s31, s28, 1\ns_add_u32 s30, s30, s31\ns_lshl_b32 s30, s30, 12\ns_add_u32 s38, s29, s30")
    A("s_lshr_b32 s30, s28, 1\ns_mul_i32 s30, s30, 7\ns_add_u32 s30, s30, 3\ns_lshl_b32 s30, s30, 13\ns_lshl_b32 s31, s31, 9\ns_add_u32 s39, s29, s30\ns_add_u32 s39, s39, s31")
    A("s_add_u32 s61, s38, 8192\ns_add_u32 s62, s38, 16384")
    A(f"s_lshr_b32 s30, s2, 4\ns_mul_i32 s30, s30, {224*2048}\ns_and_b32 s31, s2, 15\ns_lshl_b32 s31, s31, 7\ns_add_u32 s30, s30, s31\ns_lshl_b32 s31, s26, 14\ns_add_u32 s30, s30, s31")
    A(f"s_add_u32 s56, s52, s30\ns_addc_u32 s57, s53, 0\ns_mul_i32 s58, s60, {6*65536 + 8*2048 - 15*128}\ns_mov_b32 s59, 0x20000")
    A(f"s_mov_b32 s70, 0\ns_lshl_b32 s71, s26, 10\ns_add_u32 s71, s71, {PK}\ns_add_u32 s72, s71, {7*4096}")
    srd(A, 40, 24, 3584*2048, WS_WDP)
    A("s_and_b32 s30, s2, 15\ns_mul_i32 s30, s30, 112\ns_lshr_b32 s31, s2, 4\ns_mul_i32 s31, s31, 7\ns_add_u32 s30, s30, s31\ns_lshl_b32 s30, s30, 2\ns_add_u32 s30, s30, s26\ns_lshl_b32 s44, s30, 10")
    A(f"s_bfe_u32 s45, s2, 0x30001\ns_lshl_b32 s45, s45, 1\ns_lshr_b32 s30, s2, 7\ns_add_u32 s45, s45, s30\ns_add_u32 s45, s45, {F_C}\ns_lshl_b32 s45, s45, 10")
    A(f"s_lshl_b32 s46, s27, 1\ns_lshr_b32 s30, s28, 4\ns_add_u32 s46, s46, s30\ns_add_u32 s46, s46, {F_B}\ns_lshl_b32 s46, s46, 10\ns_add_u32 s46, s46, s85")
    A(f"s_add_u32 s47, s27, {F_A}\ns_lshl_b32 s47, s47, 10\ns_add_u32 s47, s47, s85")
    signal(A, "s49", 32)
    ST("ln_signaled")
    def trread(q, half, s, st, n):
        slot = s % 4
        base = "v1" if slot < 2 else "v2"
        off = (slot % 2)*SLOT + st*14336 + (n & 1)*7168 + (n >> 1)*32 + half*3584
        A(f"ds_read_b64_tr_b16 {ar(WR + (q % R)*4 + half*2, 2)}, {base} offset:{off}")
    frags = [(s, st, n) for s in range(13) for st in range(2) for n in range(14)]
    NQ0 = len(frags)
    def pf(j, sss): return [(13 + ss//2, ss % 2, 2*j + m) for ss in sss for m in range(2)]
    frags += pf(0, [0]) + pf(1, [0]) + pf(0, [1,2,3]) + pf(1, [1,2,3]) + pf(2, [0,1,2,3]) + pf(0, [4,5]) + pf(1, [4,5]) + pf(2, [4,5])
    for j in range(3, 7): frags += pf(j, range(6))
    assert NWPRE in (2, 3)
    for q in range(D):
        for half in range(2): trread(q, half, *frags[q])
    wait(A, "s47")
    ST("g1_go")
    for t in range(2):
        for x in range(4): both(xload, t, x)
    def pack_dma(emit):
        if emit:
            A("s_min_u32 m0, s71, s72\ns_add_u32 s71, s71, 4096")
            A("buffer_load_dwordx4 v11, s[56:59], s70 offen lds\ns_add_u32 s70, s70, 65536")
        else:
            vm.issue("P"); vt.issue("P")
    def stage(s, emit, key, extra=None, bp=barpos):
        for st in range(2):
            t = s*2 + st
            for n in range(14):
                q = t*14 + n
                w = []
                if n == 0:
                    site = ("x", key, st)
                    if not emit: vm.wait(site, [("X", t)])
                    else: w.append(vm.need[site])
                isbar = (st*14 + n == bp)
                if isbar:
                    site = ("b", key)
                    if not emit: vm.wait(site, [("W", s+1)])
                    else: w.append(vm.need[site])
                if emit:
                    ww = [f"vmcnt({min(w)})"] if w and min(w) < 63 else []
                    ww.append(f"lgkmcnt({2*(D-1)})")
                    A("s_waitcnt " + " ".join(ww))
                    if isbar: A("s_barrier")
                for x in range(4):
                    if emit:
                        xx = 3 - x if (snake and n % 2) else x
                        c = "0" if t == 0 else vr(acc(n,xx),4)
                        A(f"v_mfma_f32_16x16x32_bf16 {vr(acc(n,xx),4)}, {ar(WR+(q%R)*4,4)}, {ar(XR+(t%NX)*16+xx*4,4)}, {c}")
                        if x < 2: trread(q + D, x, *frags[q + D])
                    if extra is not None:
                        if x >= 2:
                            for th in extra.get((st*14 + n, x), []): th(emit)
                    elif x == 2:
                        pos = st*14 + n
                        if pos in xpos:
                            k = xpos.index(pos); xload(2*s + LAX + k//4, k % 4, emit)
                        if pos in wpos: dma(s+2, wpos.index(pos), emit)
                        if pos == ppos: pack_dma(emit)
    def xl(t): return [(xload, t, x) for x in range(4)]
    seq = xl(2)
    if NWPRE == 2: seq += [(dma, 2, i) for i in range(7)]
    for t in range(3, 2 + LAX): seq += xl(t)
    slots = [(n, 2) for n in range(26)]
    extra = {}
    for k, (fn, a, b) in enumerate(seq):
        sl = slots[min(len(slots)-1, k * len(slots) // max(len(seq), 1))]
        extra.setdefault(sl, []).append(lambda emit, fn=fn, a=a, b=b: fn(a, b, emit))
    bp0 = -1 if NWPRE >= 2 else 28 - D - 1
    stage(0, False, "s0", extra, bp0)
    for it in range(3):
        for sp in range(4): stage(1 + it*4 + sp, False, ("L", sp))
    stage(0, True, "s0", extra, bp0)
    ST("g1_s0")
    A("s_mov_b32 s35, 3")
    A(f".p2align 6\n{name}_g1loop:")
    for sp in range(4): stage(9 + sp, True, ("L", sp))
    A(f"s_sub_u32 s35, s35, 1\ns_cmp_lg_u32 s35, 0\ns_cbranch_scc1 {name}_g1loop")
    ST("g1_loopend")
    A(f"s_cmp_eq_u32 s60, 0\ns_cbranch_scc1 {name}_nopk2")
    for u in range(7):
        if u == 3: A(f"ds_read_b64_tr_b16 {ar(PR+4*u,2)}, v24\nds_read_b64_tr_b16 {ar(PR+4*u+2,2)}, v25")
        else: A(f"ds_read_b64_tr_b16 {ar(PR+4*u,2)}, v23 offset:{u*4096}\nds_read_b64_tr_b16 {ar(PR+4*u+2,2)}, v23 offset:{u*4096+2048}")
    for u in range(7):
        A(f"s_waitcnt lgkmcnt({12-2*u})")
        A(f"buffer_store_dwordx4 {ar(PR+4*u,4)}, v3, s[40:43], s44 offen {sf}")
        if u < 6: A("s_add_u32 s44, s44, 4096")
    A(f"{name}_nopk2:")
    xt = list(range(26 + LAX, 32))
    tl_loads = []
    while xt and xt[0] < 30: tl_loads += xl(xt.pop(0))
    tl_loads += [(dma, 15, i) for i in range(7)]
    while xt: tl_loads += xl(xt.pop(0))
    def finish(j, x):
        g = acc(2*j, x)
        if j % 2 == 1:
            return [f"buffer_store_dwordx4 {vr(acc(2*(j-1),x),4)}, v3, s[16:19], {('s38','s61','s62')[j//2]} offen offset:{x*1024} {sf}"]
        if j == 6:
            return [f"v_mov_b32 v{g+2}, v{g}\nv_mov_b32 v{g+3}, v{g+1}\ns_nop 1",
                    f"v_permlane16_swap_b32 v{g}, v{g+2}\nv_permlane16_swap_b32 v{g+1}, v{g+3}"]
        return []
    def dst(j, x): return acc(2*j, x) if j % 2 == 0 else acc(2*(j-1), x) + 2
    def epi_pk(j, x, T):
        g = acc(2*j, x); u = acc(2*j+1, x)
        L = []
        L.append(f"v_pk_mul_f32 {vr(T,2)}, {vr(g,2)}, {vr(g,2)}")
        L.append(f"v_pk_mul_f32 {vr(T+2,2)}, {vr(g+2,2)}, {vr(g+2,2)}")
        L.append(f"v_pk_fma_f32 {vr(T,2)}, {vr(T,2)}, s[36:37], v[28:29]")
        L.append(f"v_pk_fma_f32 {vr(T+2,2)}, {vr(T+2,2)}, s[36:37], v[28:29]")
        L.append(f"v_pk_mul_f32 {vr(T,2)}, {vr(T,2)}, {vr(g,2)}")
        L.append(f"v_pk_mul_f32 {vr(T+2,2)}, {vr(T+2,2)}, {vr(g+2,2)}")
        for e in range(4): L.append(f"v_exp_f32 v{T+e}, v{T+e}")
        L.append(f"v_pk_mul_f32 {vr(u,2)}, {vr(g,2)}, {vr(u,2)}")
        L.append(f"v_pk_add_f32 {vr(T,2)}, {vr(T,2)}, 1.0 op_sel_hi:[1,0]")
        L.append(f"v_pk_add_f32 {vr(T+2,2)}, {vr(T+2,2)}, 1.0 op_sel_hi:[1,0]")
        for e in range(4): L.append(f"v_rcp_f32 v{T+e}, v{T+e}")
        L.append(f"v_pk_mul_f32 {vr(u+2,2)}, {vr(g+2,2)}, {vr(u+2,2)}")
        L.append(f"v_pk_mul_f32 {vr(u,2)}, {vr(u,2)}, {vr(T,2)}")
        L.append(f"v_pk_mul_f32 {vr(u+2,2)}, {vr(u+2,2)}, {vr(T+2,2)}")
        d = dst(j, x)
        L.append(f"v_cvt_pk_bf16_f32 v{d}, v{u}, v{u+1}")
        L.append(f"v_cvt_pk_bf16_f32 v{d+1}, v{u+2}, v{u+3}")
        return L + finish(j, x)
    class Grp:
        def __init__(s, j, x, T):
            g = acc(2*j, x); u = acc(2*j+1, x); d = dst(j, x)
            s.j, s.x, s.T = j, x, T
            s.ops = []; fin = []
            for e in range(4):
                t = T + e; b = len(s.ops)
                s.ops += [["V", f"v_mul_f32 v{t}, v{g+e}, v{g+e}", []],
                          ["V", f"v_fma_f32 v{t}, v{t}, s36, v28", [b]],
                          ["V", f"v_mul_f32 v{t}, v{t}, v{g+e}", [b+1]],
                          ["T", f"v_exp_f32 v{t}, v{t}", [b+2]],
                          ["V", f"v_add_f32 v{t}, 1.0, v{t}", [b+3]],
                          ["T", f"v_rcp_f32 v{t}, v{t}", [b+4]],
                          ["V", f"v_mul_f32 v{u+e}, v{g+e}, v{u+e}", []],
                          ["V", f"v_mul_f32 v{u+e}, v{u+e}, v{t}", [b+5, b+6]]]
                fin.append(b+7)
            gdeps = [i for e in range(4) for i in (8*e+2, 8*e+6)]
            s.ops.append(["V", f"v_cvt_pk_bf16_f32 v{d}, v{u}, v{u+1}", fin[:2] + gdeps])
            s.ops.append(["V", f"v_cvt_pk_bf16_f32 v{d+1}, v{u+2}, v{u+3}", fin[2:] + gdeps])
            n = len(s.ops)
            for f in finish(j, x): s.ops.append(["F", f, [n-2, n-1]])
            s.done = [None]*len(s.ops)
        def ready(s, types, now):
            for i, (ty, tx, dp) in enumerate(s.ops):
                if s.done[i] is None and ty in types and all(s.done[k] is not None and s.done[k] + (2 if s.ops[k][0] == "T" else 1) <= now for k in dp):
                    return i
            return None
        def finished(s): return all(d is not None for d in s.done)
    tail = frags[NQ0:]
    last_pos = {}
    for p, (s_, st_, n_) in enumerate(tail): last_pos[n_ >> 1] = p
    done_at = {p: j for j, p in last_pos.items()}
    first_use = {}
    for p, (s_, st_, n_) in enumerate(tail): first_use.setdefault((s_-13)*2 + st_, p)
    bar14 = first_use[2] - D; bar15 = first_use[4] - D
    pending = []; active = []; temps = [12, 16]
    mi = 0; now = 0
    for p, (s_, st_, n_) in enumerate(tail):
        q = NQ0 + p
        ss = (s_-13)*2 + st_
        w = []; cands = []
        if first_use[ss] == p: vt.wait(("t", ss), [("X", 26 + ss)]); cands.append(vt.need[("t", ss)])
        if p == bar14: vt.wait("tb14", [("W", 14)]); cands.append(vt.need["tb14"])
        if p == bar15: vt.wait("tb15", [("W", 15)]); cands.append(vt.need["tb15"])
        if cands: w.append(f"vmcnt({min(cands)})")
        if p % 2 == 0:
            rem = len(tail) - p - 2
            w.append(f"lgkmcnt({min(2*(D-2), 2*rem)})")
        if w: A("s_waitcnt " + " ".join(w))
        if p == bar14 or p == bar15: A("s_barrier")
        if p == bar15:
            A(f"s_cmp_eq_u32 s60, 0\ns_cbranch_scc1 {name}_noc")
            post(A, ["s45"])
            A(f"{name}_noc:")
        for x in range(4):
            xs_ = 3 - x if (snake and n_ % 2) else x
            A(f"v_mfma_f32_16x16x32_bf16 {vr(acc(n_,xs_),4)}, {ar(WR+(q%R)*4,4)}, {ar(XR+((26+ss)%NX)*16+xs_*4,4)}, {vr(acc(n_,xs_),4)}")
            mi += 1; now += 1
            if x < 2 and p + D < len(tail): trread(q + D, x, *tail[p + D]); now += 1
            while pending and pending[0][0] <= mi and temps and len(active) < 2:
                _, j, xx = pending.pop(0); active.append(Grp(j, xx, temps.pop(0)))
            if x >= 2 and tl_loads and (x == 2 or p % 2 == 0):
                fn, a_, b_ = tl_loads.pop(0); both(fn, a_, b_)
            pat = slots_pat[x]
            for ch in {"V": ["V"], "T": ["TV"], "A": ["TV"], "": []}[pat]:
                for ty in ch:
                    hit = None
                    for g in active:
                        i = g.ready(ty + ("F" if ty == "V" else ""), now)
                        if i is not None: hit = (g, i); break
                    if hit:
                        g, i = hit; A(g.ops[i][1]); g.done[i] = now; now += 1
                        if "buffer_store" in g.ops[i][1]: vt.issue("S")
                        break
            for g in list(active):
                if g.finished(): active.remove(g); temps.append(g.T)
        if p in done_at:
            j = done_at[p]
            for x in range(4): pending.append((mi + 5 + x, j, 3 - x if snake else x))
    A("s_nop 7")
    ST("g1_mfmaend")
    now += 8
    while active:
        prog = False
        for g in list(active):
            i = g.ready("VTF", now)
            if i is not None: A(g.ops[i][1]); g.done[i] = now; now += 1; prog = True
            if g.finished(): active.remove(g)
        if not prog: A("s_nop 0"); now += 1
    for k, (_, j, xx) in enumerate(pending):
        for ins in epi_pk(j, xx, 12 + 4*(k % 2)): A(ins)
    A("s_mov_b32 exec_lo, 0xffff\ns_mov_b32 exec_hi, 0xffff")
    for x in range(4):
        A(f"buffer_store_dwordx4 {vr(acc(12,x),4)}, v30, s[16:19], s39 offen offset:{x*1024} {sf}")
    A("s_mov_b64 exec, -1")
    ST("g1_stored")
    ACC2 = 64
    def acc2(x, j): return ACC2 + (x*2 + j)*4
    WRG = 0; NW = 8; HR = 64; R2 = 8; SLOT2 = 32768; D2 = g2D
    A("s_and_b32 s33, s2, 1")
    A("s_bfe_u32 s27, s2, 0x20001\ns_lshl_b32 s27, s27, 2\ns_bfe_u32 s29, s2, 0x20003\ns_add_u32 s27, s27, s29\ns_lshr_b32 s28, s2, 5")
    A("v_lshlrev_b32 v128, 4, v31\nv_add_u32 v129, 4096, v128")
    A(f"v_mov_b32 v130, v128\nv_add_u32 v131, {2*SLOT2}, v128")
    A(f"s_mul_i32 s30, s33, 56\ns_mul_i32 s29, s27, 112\ns_add_u32 s29, s29, s30\ns_add_u32 s29, s29, s26\ns_lshl_b32 s29, s29, 13\ns_add_u32 s29, s29, {O_H}")
    A(f"s_lshl_b32 s31, s28, 1\ns_lshr_b32 s32, s26, 1\ns_add_u32 s31, s31, s32\ns_mul_i32 s31, s31, 112\ns_add_u32 s31, s31, s30\ns_lshl_b32 s31, s31, 12")
    A(f"s_and_b32 s32, s26, 1\ns_lshl_b32 s32, s32, 11\ns_add_u32 s31, s31, s32\ns_add_u32 s31, s31, {WS_WDP}")
    A("s_lshl_b32 s22, s26, 13")
    A(f"s_sub_u32 s34, {56*8192}, s22\ns_sub_u32 s32, {56*4096}, s32")
    A("s_mov_b32 s20, 0\ns_mov_b32 s21, 0")
    A(f"s_add_u32 s8, s86, s29\ns_addc_u32 s9, s87, 0\ns_mov_b32 s10, s34\ns_mov_b32 s11, 0x20000")
    A(f"s_add_u32 s12, s24, s31\ns_addc_u32 s13, s25, 0\ns_mov_b32 s14, s32\ns_mov_b32 s15, 0x20000")
    A("v_and_b32 v12, 15, v31\nv_bfe_u32 v13, v31, 4, 1\nv_lshrrev_b32 v14, 5, v31\nv_lshl_add_u32 v13, v13, 1, v14")
    A("v_and_b32 v132, 7, v12\nv_lshlrev_b32 v132, 4, v132\nv_lshl_add_u32 v132, v13, 7, v132\nv_lshrrev_b32 v12, 3, v12\nv_lshl_add_u32 v132, v12, 9, v132\nv_add_u32 v133, %d, v132" % (32*KP))
    A("s_lshl_b32 s29, s27, 6\ns_lshl_b32 s30, s28, 2\ns_add_u32 s29, s29, s30\ns_add_u32 s29, s29, s26\ns_mul_i32 s36, s29, %d" % KP)
    A(f"s_and_b32 s47, s27, 14\ns_add_u32 s47, s47, s33\ns_add_u32 s47, s47, {F_B}\ns_lshl_b32 s47, s47, 10\ns_add_u32 s47, s47, s85")
    A(f"s_lshl_b32 s45, s28, 1\ns_add_u32 s45, s45, s33\ns_add_u32 s45, s45, {F_C}\ns_lshl_b32 s45, s45, 10")
    A(f"s_add_u32 s49, s27, {F_D}\ns_lshl_b32 s49, s49, 10\ns_add_u32 s49, s49, s85")
    A(f"s_mul_i32 s29, s33, {O_T1 - O_T0}\ns_add_u32 s29, s29, {O_T0}")
    A(f"s_add_u32 s16, s86, s29\ns_addc_u32 s17, s87, 0\ns_mov_b32 s18, {XFB}\ns_mov_b32 s19, 0x20000")
    signal(A, "s46", 16)
    ST("g1_signaled")
    A(f"s_cmp_eq_u32 s60, 0\ns_cbranch_scc1 {name}_nocw")
    wait(A, "s45", 16)
    A(f"{name}_nocw:")
    vm2 = VmTrack()
    wslots = [0 + 8*k for k in range(8)] + [96 + 8*k for k in range(12)] + [224 + 8*k for k in range(4)]
    NWS = len(wslots)
    def wreg(t, j): return wslots[t % NWS] + 4*j
    def wload(t, j):
        A(f"buffer_load_dwordx4 {ar(wreg(t, j), 4)}, v128, s[12:15], s21 offen offset:{j*1024}")
        if j == 1: A("s_add_u32 s21, s21, 4096")
        vm2.issue(("W", t))
    def hdma(s, i):
        if i % 4 == 0:
            A(f"s_add_u32 m0, s22, {(s % 4)*SLOT2 + i*1024}\ns_nop 0")
        A(f"buffer_load_dwordx4 v{128 + i//4}, s[8:11], s20 offen offset:{(i%4)*1024} lds")
        if i == 7: A("s_add_u32 s20, s20, 32768")
        vm2.issue(("H", s))
    for t in range(g2P):
        for j in range(2): wload(t, j)
    wait(A, "s47")
    ST("g2_go")
    for s_ in range(2):
        for i in range(8): hdma(s_, i)
    def hread(q):
        if q >= 448: return
        base = "v130" if (q // 64) % 2 == 0 else "v131"
        A(f"ds_read_b128 {ar(HR + (q % R2)*4, 4)}, {base} offset:{(q % 64)*1024}")
    wq = {}
    for k, t_ in enumerate(range(g2P, 56)):
        pos = int(8*(max(1, t_ - NWS + 1) if False else 0) + 8*(g2T0 + g2rate*k))
        pos = max(pos, 8*(t_ - NWS + 1))
        assert pos + 4 <= 8*(t_ - 3), (t_, pos)
        wq.setdefault(pos, []).append((t_, 0)); wq.setdefault(pos + 4, []).append((t_, 1))
    vm2.wait("pro", [("H", 0)])
    A(f"s_waitcnt vmcnt({vm2.need['pro']})\ns_barrier")
    for q in range(D2): hread(q)
    lastn = None
    for t in range(56):
        s, st = t // 4, t % 4
        for x in range(8):
            pos = st*8 + x; q = t*8 + x
            w = []
            if x == 0 and t >= g2P - 1:
                vm2.wait(("w", t), [("W", t)]); w.append(vm2.need[("w", t)])
            isbar = (pos == g2bar and s < 13)
            if isbar:
                vm2.wait(("b", s), [("H", s+1)]); w.append(vm2.need[("b", s)])
            ww = [f"vmcnt({min(w)})"] if w and min(w) < 63 else []
            if x % 2 == 0: ww.append(f"lgkmcnt({min(D2-2, max(0, 448 - q - 2))})")
            if ww: A("s_waitcnt " + " ".join(ww))
            if isbar: A("s_barrier")
            for jj in range(2):
                j = jj if (x % 2 == 0 or not snake) else 1 - jj
                c = "0" if t == 0 else vr(acc2(x,j),4)
                A(f"v_mfma_f32_16x16x32_bf16 {vr(acc2(x,j),4)}, {ar(wreg(t,j),4)}, {ar(HR+(q%R2)*4,4)}, {c}")
                if jj == 0: hread(q + D2)
                else:
                    if pos in hpos and s + 2 < 14: hdma(s+2, hpos.index(pos))
                    for (t_, j_) in wq.get(q, []): wload(t_, j_)
    ST("g2_loopend")
    for x in range(8):
        a = acc2(x, 0); r = 32 + 4*x
        for e in range(4): A(f"v_cvt_pk_bf16_f32 v{r+e}, v{a+2*e}, v{a+2*e+1}")
        if x >= 1:
            pr = r - 4
            A(f"v_permlane16_swap_b32 v{pr}, v{pr+2}\nv_permlane16_swap_b32 v{pr+1}, v{pr+3}")
            A(f"buffer_store_dwordx4 {vr(pr,4)}, v{132 + (x-1)//4}, s[16:19], s36 offen offset:{((x-1)%4)*1024} {sf}")
    A(f"s_nop 1\nv_permlane16_swap_b32 v60, v62\nv_permlane16_swap_b32 v61, v63")
    A(f"buffer_store_dwordx4 v[60:63], v133, s[16:19], s36 offen offset:3072 {sf}")
    A("s_waitcnt lgkmcnt(0)")
    signal(A, "s49", 16)
    ST("g2_signaled")
    A(f"s_cmp_eq_u32 s60, 0\ns_cbranch_scc1 {name}_fin")
    A(f"s_mov_b32 s60, 0\ns_mov_b32 s94, 32\ns_mov_b32 s85, 65536\ns_add_u32 s86, s86, {LSTRIDE}\ns_addc_u32 s87, s87, 0")
    A(f"s_branch {name}_layer")
    A(f"{name}_fin:")
    tg_map(A)
    A(f"s_lshr_b32 s34, s3, 4\ns_add_u32 s34, s34, {F_D}\ns_lshl_b32 s34, s34, 10\ns_add_u32 s34, s34, s85")
    srd(A, 8, 86, XFB, O_T0)
    srd(A, 40, 86, XFB, O_T1)
    srd(A, 16, 82, 4 << 20)
    unstash_x()
    wait(A, "s34")
    ST("fin_go")
    tloads()
    for i in range(4):
        A(f"s_waitcnt vmcnt({6 - 2*i + i})")
        tsum(i)
        A(f"buffer_store_dwordx4 {vr(RX+4*i,4)}, v13, s[16:19], s33 offen offset:{128*i}")
    if stamps:
        A("s_waitcnt vmcnt(0)")
        ST("end")
        srd(A, 8, 24, 1 << 20, WS_STAMP + (1 << 20))
        A("s_lshl_b32 s29, s2, 2\ns_add_u32 s29, s29, s26\ns_lshl_b32 s29, s29, 8\nv_lshlrev_b32 v1, 2, v31")
        A("buffer_store_dword v0, v1, s[8:11], s29 offen")
    A(f"{name}_end:\ns_endpgm")
    A(f"{name}_stats:")
    A("v_mov_b32 v160, 0\nv_mov_b32 v161, 0\nv_mov_b32 v162, 0\nv_mov_b32 v163, 0")
    for i in range(0, 16, 2):
        A(f"v_dot2c_f32_bf16 v160, s38, v{RX+i}\nv_dot2c_f32_bf16 v161, v{RX+i}, v{RX+i}")
        A(f"v_dot2c_f32_bf16 v162, s38, v{RX+i+1}\nv_dot2c_f32_bf16 v163, v{RX+i+1}, v{RX+i+1}")
    A("s_nop 2")
    A("v_pk_add_f32 v[160:161], v[160:161], v[162:163]")
    A("s_nop 1")
    A("v_add_f32_dpp v160, v160, v160 row_ror:8 row_mask:0xf bank_mask:0xf\nv_add_f32_dpp v161, v161, v161 row_ror:8 row_mask:0xf bank_mask:0xf")
    for sw in ("v_permlane16_swap_b32", "v_permlane32_swap_b32"):
        A("v_mov_b32 v162, v160\nv_mov_b32 v163, v161\ns_nop 1")
        A(f"{sw} v160, v162\n{sw} v161, v163")
        A("s_nop 0")
        A("v_pk_add_f32 v[160:161], v[160:161], v[162:163]")
    A(f"ds_write_b64 v14, v[160:161]\ns_waitcnt lgkmcnt(0)\ns_barrier")
    for k in range(2): A(f"ds_read_b128 {vr(Z+4*k,4)}, v15 offset:{16*k}")
    A("s_waitcnt lgkmcnt(0)")
    A(f"v_pk_add_f32 {vr(Z,2)}, {vr(Z,2)}, {vr(Z+2,2)}\nv_pk_add_f32 {vr(Z+4,2)}, {vr(Z+4,2)}, {vr(Z+6,2)}")
    A(f"v_pk_add_f32 v[160:161], {vr(Z,2)}, {vr(Z+4,2)}")
    A("v_mul_f32 v160, s48, v160\nv_mul_f32 v161, s48, v161\nv_fma_f32 v161, -v160, v160, v161\nv_max_f32 v161, 0, v161")
    round_bf16(A, 160); round_bf16(A, 161)
    A("v_add_f32 v161, s39, v161"); round_bf16(A, 161)
    A("v_sqrt_f32 v161, v161\ns_nop 0"); round_bf16(A, 161)
    A("v_rcp_f32 v162, v161\ns_nop 0\nv_mul_f32 v160, -v160, v162")
    A("s_setpc_b64 s[54:55]")
    A(f"{name}_codeend:")
    gen_mega.names = ST.names
    return kernel_desc(name, 512, 256, 102)
```

```python
import sys
from asmlib import *
from gemm1 import *
from mega import gen_mega, MEGA_LDS
NAME = "interleave_layers__ssm_conv_h3__geglu_ffn__prompt"
HEADER = open(f"cdna_kernels/{NAME}.s.ref").read().split("; Override launch")[0]

def build_all(stamps=False, mg={}, single=False):
    if single:
        launches = [HEADER.rstrip("\n"), f"; @launch grid=(256,1,1) block=(256,1,1) lds={MEGA_LDS}"]
        return wrap(launches, [lambda A: gen_mega(A, name=NAME + "_kernel", stamps=stamps, **mg)])
    launches = [HEADER.rstrip("\n"), f"; @launch kernel=main_kernel grid=(256,1,1) block=(256,1,1) lds={MEGA_LDS}"]
    return wrap(launches, [lambda A: gen_mega(A, stamps=stamps, **mg)])

if __name__ == "__main__":
    open(f"cdna_kernels/{NAME}.s", "w").write(build_all(single=True))
```

```python
from asmlib import *
from gemm1 import f2u, stamp_tail
WS_UT = 106 << 20
UTP = 4096 + 256

def gen_k0(A, name="prep_kernel", stamps=False, codepf=None, zero=None, ssmpf=False, wpf=0, qpf=False, sf="sc1"):
    K = 16; V = 44; F = 60; R = 116; O = 148
    kernel_begin(A, name)
    A("s_cmp_ge_u32 s2, 256\ns_cbranch_scc1 %s_end" % name)
    A("s_load_dwordx8 s[4:11], s[0:1], 8")
    A("s_load_dwordx2 s[24:25], s[0:1], 96")
    A("s_load_dwordx4 s[52:55], s[0:1], 56")
    A("s_load_dwordx2 s[56:57], s[0:1], 0")
    if stamps: A("s_memtime s[40:41]\ns_memrealtime s[50:51]")
    A("v_lshrrev_b32 v1, 6, v0")
    A("v_and_b32 v15, 63, v0")
    A("v_readfirstlane_b32 s26, v1")
    A("v_lshlrev_b32 v3, 4, v15")
    A("s_and_b32 s27, s2, 15\ns_lshr_b32 s28, s2, 4")
    A("v_lshrrev_b32 v4, 3, v0\nv_and_b32 v5, 7, v0")
    A("v_lshlrev_b32 v2, 13, v4\nv_lshl_add_u32 v2, v5, 4, v2")
    A("s_lshl_b32 s29, s28, 18\ns_lshl_b32 s30, s27, 7\ns_add_u32 s29, s29, s30")
    A("v_add_u32 v2, s29, v2\nv_subrev_u32 v6, 6144, v2\nv_subrev_u32 v7, 2048, v2\nv_add_u32 v8, 4096, v2")
    A("v_lshlrev_b32 v9, 6, v5\ns_lshl_b32 s31, s27, 9")
    A("s_waitcnt lgkmcnt(0)")
    srd(A, 12, 4, 4 << 20); srd(A, 16, 6, 4 << 20); srd(A, 20, 8, 8192)
    kaddr = [("v6", 0), ("v6", 2048), ("v7", 0), ("v2", 0), ("v2", 2048), ("v8", 0), ("v8", 2048)]
    for j in (3, 4, 5, 6):
        A(f"buffer_load_dwordx4 {vr(K+4*j,4)}, {kaddr[j][0]}, s[12:15], 0 offen offset:{kaddr[j][1]}")
    for j in range(4):
        A(f"buffer_load_dwordx4 {vr(V+4*j,4)}, {kaddr[3+j][0]}, s[16:19], 0 offen offset:{kaddr[3+j][1]}")
    for j in (0, 1, 2):
        A(f"buffer_load_dwordx4 {vr(K+4*j,4)}, {kaddr[j][0]}, s[12:15], 0 offen offset:{kaddr[j][1]}")
    S = 164
    for j in range(4):
        A(f"buffer_load_dwordx4 {vr(S+4*j,4)}, v9, s[20:23], s31 offen offset:{16*j}")
    n_after = 0
    if codepf:
        A(f"s_getpc_b64 s[72:73]\n{name}_pc:")
        A(f"s_add_u32 s72, s72, {codepf[0]}-{name}_pc\ns_addc_u32 s73, s73, 0")
        A(f"s_mov_b32 s74, {codepf[1]}-{codepf[0]}\ns_mov_b32 s75, 0x20000")
        A("s_lshr_b32 s33, s2, 3\ns_lshl_b32 s33, s33, 2\ns_add_u32 s33, s33, s26\ns_lshl_b32 s33, s33, 9\nv_lshlrev_b32 v10, 7, v15")
        A("s_mov_b64 exec, 15\nbuffer_load_dword v14, v10, s[72:75], s33 offen\ns_mov_b64 exec, -1")
        n_after += 1
    if ssmpf:
        A(f"s_mov_b32 s76, s10\ns_mov_b32 s77, s11\ns_mov_b32 s78, {4<<20}\ns_mov_b32 s79, 0x20000")
        A("s_lshl_b32 s33, s2, 2\ns_add_u32 s33, s33, s26\ns_lshl_b32 s33, s33, 12\nv_lshlrev_b32 v10, 7, v15")
        A("s_mov_b32 exec_hi, 0\nbuffer_load_dword v14, v10, s[76:79], s33 offen\ns_mov_b32 exec_hi, -1")
        n_after += 1
    if wpf:
        lines = wpf*56*2 // 1024
        A("s_lshl_b32 s33, s2, 2\ns_add_u32 s33, s33, s26\ns_cmp_lt_u32 s33, 512\ns_cselect_b32 s60, s52, s54\ns_cselect_b32 s61, s53, s55")
        A(f"s_mov_b32 s62, {wpf*7168}\ns_mov_b32 s63, 0x20000\ns_and_b32 s33, s33, 511\ns_mul_i32 s33, s33, {lines*128}\nv_lshlrev_b32 v10, 7, v15")
        A(f"s_mov_b32 exec_lo, {hex((1<<min(32,lines))-1)}\ns_mov_b32 exec_hi, {hex((1<<max(0,lines-32))-1)}")
        A("buffer_load_dword v14, v10, s[60:63], s33 offen\ns_mov_b64 exec, -1")
        n_after += 1
    if qpf:
        srd(A, 64, 56, 4 << 20)
        A("s_lshl_b32 s33, s2, 2\ns_add_u32 s33, s33, s26\ns_lshl_b32 s33, s33, 12\nv_lshlrev_b32 v10, 7, v15")
        A("s_mov_b32 exec_hi, 0\nbuffer_load_dword v14, v10, s[64:67], s33 offen\ns_mov_b32 exec_hi, -1")
        n_after += 1
    if zero is not None:
        A(f"s_lshl_b32 s33, s26, 8\ns_add_u32 s33, s33, s2\ns_cmp_ge_u32 s33, {zero[1]//1024}\ns_cbranch_scc1 {name}_nz")
        srd(A, 76, 24, zero[1], zero[0])
        A("s_lshl_b32 s33, s33, 10\nv_mov_b32 v10, 0\nv_mov_b32 v11, 0\nv_mov_b32 v12, 0\nv_mov_b32 v13, 0")
        A("buffer_store_dwordx4 v[10:13], v3, s[76:79], s33 offen")
        A(f"{name}_nz:")
    srd(A, 32, 24, 1024*UTP, WS_UT)
    A("v_sub_u32 v11, 31, v4\nv_lshrrev_b32 v12, 1, v11\nv_xor_b32 v12, v12, v5\nv_and_b32 v11, 1, v11\nv_lshlrev_b32 v11, 3, v11")
    A("v_lshl_add_u32 v10, v12, 4, v11\nv_lshl_add_u32 v10, v5, 11, v10")
    A("v_lshrrev_b32 v11, 4, v15\nv_and_b32 v12, 15, v15\ns_lshl_b32 s36, s26, 1")
    A("v_xor_b32 v13, s36, v12\nv_lshlrev_b32 v13, 4, v13\nv_lshl_add_u32 v13, v11, 8, v13\ns_lshl_b32 s36, s26, 12\nv_add_u32 v1, s36, v13\nv_xor_b32 v9, 16, v1")
    A(f"v_mul_u32_u24 v11, {UTP}, v11\nv_lshl_add_u32 v8, v12, 4, v11")
    A(f"s_lshl_b32 s36, s27, 2\ns_add_u32 s36, s36, s26\ns_mul_i32 s36, s36, {16*UTP}\ns_lshl_b32 s37, s28, 8\ns_sub_u32 s37, 3840, s37\ns_add_u32 s36, s36, s37")
    A(f"s_waitcnt vmcnt({n_after})")
    if stamps: A("s_memtime s[42:43]")
    C = S + 16
    for c in range(8):
        for i in range(4):
            src = S + 2*c + (i >> 1)
            A(f"v_lshlrev_b32 v{C+i*8+c}, 16, v{src}" if i % 2 == 0 else f"v_and_b32 v{C+i*8+c}, 0xffff0000, v{src}")
    for j in range(7):
        for d in range(4):
            A(f"v_lshlrev_b32 v{F+8*j+2*d}, 16, v{K+4*j+d}\nv_and_b32 v{F+8*j+2*d+1}, 0xffff0000, v{K+4*j+d}")
    for r in range(4):
        for d in range(4):
            dst = vr(R+8*r+2*d, 2)
            A(f"v_pk_mul_f32 {dst}, {vr(F+8*(3+r)+2*d,2)}, {vr(C+2*d,2)}")
            for i in range(1, 4):
                A(f"v_pk_fma_f32 {dst}, {vr(F+8*(3+r-i)+2*d,2)}, {vr(C+i*8+2*d,2)}, {dst}")
            A(f"v_lshlrev_b32 v12, 16, v{V+4*r+d}\nv_and_b32 v13, 0xffff0000, v{V+4*r+d}")
            A(f"v_pk_mul_f32 {dst}, {dst}, v[12:13]")
    for c in range(8):
        A(f"v_cvt_pk_bf16_f32 v{O+2*c}, v{R+24+c}, v{R+16+c}\nv_cvt_pk_bf16_f32 v{O+2*c+1}, v{R+8+c}, v{R+c}")
        A(f"ds_write_b64 v10, {vr(O+2*c,2)} offset:{256*c}")
    A("s_waitcnt lgkmcnt(0)\ns_barrier")
    for i in range(4):
        A(f"ds_read_b128 {vr(F+4*i,4)}, {'v1' if i < 2 else 'v9'} offset:{1024*i}")
    for i in range(4):
        A(f"s_waitcnt lgkmcnt({3-i})")
        A(f"buffer_store_dwordx4 {vr(F+4*i,4)}, v8, s[32:35], s36 offen {sf}")
        if i < 3: A(f"s_add_u32 s36, s36, {4*UTP}")
    if stamps:
        A("s_memtime s[44:45]")
        stamp_tail(A)
    A(f"{name}_end:\ns_endpgm")
    return kernel_desc(name, 216, 216)
```

```python
from asmlib import *
from gemm1 import f2u, wrap
from k0 import WS_UT, UTP
YGS = 16384 + 128

LSTRIDE = 48 << 20
O_XN, O_H, O_T0, O_T1 = 0, 5 << 20, 20 << 20, 26 << 20
WS_WDP = 32 << 20
WS_Y = 44 << 20
WS_Y = 100 << 20
WS_FLAG = 112 << 20
WS_STAMP = 120 << 20
F_A, F_B, F_D, F_C = 0, 8, 24, 40
F_Y1, F_Y2 = 56, 104
MEGA_LDS = 114688 + 32768
LN_LDS = 114688 + 7*4096

class Stamper:
    def __init__(s, A, on): s.A, s.on, s.n, s.names = A, on, 0, []
    def __call__(s, name):
        if not s.on: return
        s.A(f"s_memrealtime s[92:93]\ns_waitcnt lgkmcnt(0)\ns_add_u32 m0, s94, {s.n}\ns_nop 0\nv_writelane_b32 v0, s92, m0")
        s.names.append(name); s.n += 1

def lane(A, v):
    A(f"v_mbcnt_lo_u32_b32 v{v}, -1, 0\nv_mbcnt_hi_u32_b32 v{v}, -1, v{v}")

_uid = [0]
SLEEP = [1]
NREP = [4]
KPV = [4096]
def signal(A, off, tgt):
    _uid[0] += 1; u = _uid[0]
    A("s_waitcnt vmcnt(0)\ns_barrier")
    A(f"s_cmp_lg_u32 s26, 0\ns_cbranch_scc1 sig{u}")
    A("v_mov_b32 v26, 0\nv_mov_b32 v27, 1\ns_mov_b64 exec, 1")
    A(f"buffer_atomic_add v27, v26, s[88:91], {off} offen sc0 sc1")
    A(f"s_mov_b64 exec, -1\nv_lshl_add_u32 v26, v31, 7, 64\nv_add_u32 v26, 64, v26\ns_waitcnt vmcnt(0)\nv_readfirstlane_b32 s96, v27")
    A(f"s_cmp_lg_u32 s96, {tgt-1}\ns_cbranch_scc1 sig{u}")
    A(f"v_mov_b32 v27, 1\ns_mov_b64 exec, {(1<<NREP[0])-1}")
    A(f"buffer_store_dword v27, v26, s[88:91], {off} offen sc1")
    A(f"s_mov_b64 exec, -1\nsig{u}:")
def post(A, offs):
    _uid[0] += 1; u = _uid[0]
    A(f"s_cmp_lg_u32 s26, 0\ns_cbranch_scc1 sig{u}")
    A("v_mov_b32 v26, 0\nv_mov_b32 v27, 1\ns_mov_b64 exec, 1")
    for o in offs: A(f"buffer_atomic_add v27, v26, s[88:91], {o} offen sc1")
    A(f"s_mov_b64 exec, -1\nsig{u}:")
def wait(A, off, tgt=None):
    _uid[0] += 1; u = _uid[0]
    A(f"s_cmp_lg_u32 s26, 0\ns_cbranch_scc1 wt{u}")
    A(f"v_mov_b32 v26, {'s97' if tgt is None else 0}\ns_mov_b32 s95, 0x200000")
    A(f"wp{u}:\nbuffer_load_dword v27, v26, s[88:91], {off} offen sc1\ns_waitcnt vmcnt(0)\nv_readfirstlane_b32 s96, v27")
    A(f"s_cmp_ge_u32 s96, {1 if tgt is None else tgt}\ns_cbranch_scc1 wt{u}\ns_sleep {SLEEP[0]}\ns_sub_u32 s95, s95, 1\ns_cmp_lg_u32 s95, 0\ns_cbranch_scc1 wp{u}")
    A(f"wt{u}:\ns_barrier")

def round_bf16(A, v):
    A(f"v_cvt_pk_bf16_f32 v{v}, v{v}, v{v}\nv_and_b32 v{v}, 0xffff0000, v{v}")

def tg_map(A):
    A("s_lshr_b32 s3, s2, 4\ns_lshl_b32 s3, s3, 3\ns_and_b32 s29, s2, 7\ns_add_u32 s3, s3, s29\ns_lshl_b32 s3, s3, 1\ns_bfe_u32 s29, s2, 0x10003\ns_add_u32 s3, s3, s29")
    A("v_and_b32 v16, 7, v31\nv_bfe_u32 v17, v31, 3, 2\nv_lshrrev_b32 v18, 5, v31")
    KP = KPV[0]
    A(f"v_mul_u32_u24 v12, {KP}, v18\nv_lshl_add_u32 v12, v17, 7, v12\nv_lshl_add_u32 v12, v16, 4, v12")
    A(f"s_lshr_b32 s29, s3, 3\ns_lshl_b32 s29, s29, 2\ns_add_u32 s29, s29, s26\ns_mul_i32 s29, s29, {8*KP}")
    A("s_bfe_u32 s30, s3, 0x20001\ns_lshl_b32 s30, s30, 10\ns_add_u32 s29, s29, s30\ns_and_b32 s30, s3, 1\ns_lshl_b32 s30, s30, 9\ns_add_u32 s29, s29, s30")
    A(f"s_add_u32 s30, s29, {2*KP}\ns_add_u32 s31, s29, {4*KP}\ns_add_u32 s32, s29, {6*KP}")
    A("v_lshlrev_b32 v13, 11, v16\nv_lshl_add_u32 v13, v18, 6, v13\nv_lshl_add_u32 v13, v17, 4, v13")
    A("s_lshl_b32 s33, s3, 14\ns_lshl_b32 s34, s26, 9\ns_add_u32 s33, s33, s34")

def gen_mega(A, name="main_kernel", stamps=False, sf="sc1", LAX=4, NWPRE=2, w0="early", sleep=2, lstep=12, yng=32, KP=4096, nrep=4,
             wpos=(0,2,4,6,8,10,12), xpos=(15,17,19,20,22,24,25,27), barpos=14, ppos=13, slots_pat=("V","V","T","A"),
             g2D=6, g2LW=7, g2bar=16, hpos=(0,3,6,9,12,15,18,21)):
    ST = Stamper(A, stamps)
    SLEEP[0] = sleep
    NREP[0] = nrep
    KPV[0] = KP
    XFB = 1024*KP
    kernel_begin(A, name)
    A("s_cmp_ge_u32 s2, 256\ns_cbranch_scc1 %s_end" % name)
    A("s_load_dwordx2 s[80:81], s[0:1], 0")
    A("s_load_dwordx2 s[24:25], s[0:1], 96")
    A("s_load_dwordx4 s[4:7], s[0:1], 56")
    A("s_load_dwordx2 s[52:53], s[0:1], 72")
    A("s_load_dwordx2 s[82:83], s[0:1], 80")
    A("s_load_dwordx4 s[8:11], s[0:1], 32")
    A("v_lshrrev_b32 v1, 6, v0")
    A("s_mov_b32 s60, 1\ns_mov_b32 s94, 0")
    A("v_readfirstlane_b32 s26, v1")
    A("s_waitcnt lgkmcnt(0)")
    A("s_mov_b32 s86, s24\ns_mov_b32 s87, s25")
    srd(A, 88, 24, 131072, WS_FLAG)
    A(f"s_lshr_b32 s97, s2, 3\ns_and_b32 s97, s97, {nrep-1}\ns_add_u32 s97, s97, 1\ns_lshl_b32 s97, s97, 7")
    A("s_mov_b32 s85, 0")
    X = 32; RX = 64; RY = 80; Y = 96; RB = 128; RC = 144; Z = 96; SV = 160
    AX = 192; AY = 208
    c0 = -2.0 * 1.4426950408889634 * 0.7978845608028654
    c1 = c0 * 0.044715
    D = 4; ACC = 32
    def acc(n, x): return ACC + (n*4 + x)*4
    XR = 0; NX = 8; WR = 128; R = 8; PR = 160
    SLOT = 28672; PK = 4*SLOT
    def g1_vectors():
        A("s_and_b32 s27, s2, 1\ns_lshl_b32 s27, s27, 2\ns_lshr_b32 s28, s2, 3\ns_and_b32 s34, s28, 3\ns_add_u32 s27, s27, s34")
        A("s_bfe_u32 s34, s2, 0x20001\ns_lshl_b32 s34, s34, 3\ns_lshr_b32 s28, s28, 2\ns_add_u32 s28, s28, s34")
        A("v_lshlrev_b32 v3, 4, v31")
        A("s_movk_i32 s34, 4682\ns_movk_i32 s35, 7168")
        A("s_and_b32 s36, s28, 1\ns_lshl_b32 s36, s36, 1")
        for i in range(7):
            v = 4 + i
            A(f"v_add_u32 v20, {64*i}, v31")
            A("v_mul_u32_u24 v21, s34, v20\nv_lshrrev_b32 v21, 16, v21")
            A("v_mul_u32_u24 v22, 14, v21\nv_sub_u32 v22, v20, v22")
            A("v_add_u32 v22, s36, v22\nv_subrev_u32 v26, 14, v22\nv_min_u32 v22, v22, v26")
            A("v_bfe_u32 v19, v21, 2, 2\nv_lshlrev_b32 v19, 3, v19\nv_lshrrev_b32 v26, 4, v21\nv_lshl_add_u32 v19, v26, 2, v19\nv_and_b32 v26, 3, v21\nv_add_u32 v19, v19, v26")
            A(f"v_mul_u32_u24 v19, s35, v19\nv_lshl_add_u32 v{v}, v22, 4, v19")
            if (i % 4): A(f"v_subrev_u32 v{v}, {1024*(i%4)}, v{v}")
        A("v_lshrrev_b32 v20, 2, v31\nv_mul_u32_u24 v20, 224, v20\nv_and_b32 v21, 3, v31\nv_lshl_add_u32 v1, v21, 3, v20")
        A(f"v_add_u32 v2, {2*SLOT}, v1")
        A("v_lshrrev_b32 v20, 3, v31\nv_bfe_u32 v21, v31, 1, 2\nv_bfe_u32 v22, v31, 4, 2\nv_xor_b32 v21, v21, v22")
        A("v_and_b32 v22, 1, v31\nv_lshl_add_u32 v21, v21, 1, v22\nv_lshlrev_b32 v21, 4, v21\nv_lshl_add_u32 v11, v20, 11, v21")
        A(f"v_mov_b32 v28, {f2u(c0)}\nv_mov_b32 v29, {f2u(c0)}")
        A("v_and_b32 v30, 15, v31\nv_lshlrev_b32 v30, 4, v30\nv_lshrrev_b32 v20, 5, v31\nv_lshl_add_u32 v30, v20, 8, v30")
        A(f"v_lshrrev_b32 v20, 2, v31\nv_lshlrev_b32 v20, 7, v20\nv_and_b32 v21, 3, v31\nv_lshl_add_u32 v20, v21, 3, v20\nv_add_u32 v20, {PK}, v20")
        A("v_bfe_u32 v22, v31, 3, 2\nv_xor_b32 v22, s26, v22\nv_lshl_add_u32 v23, v22, 5, v20")
        A(f"v_lshrrev_b32 v20, 4, v31\nv_lshlrev_b32 v20, 3, v20\nv_bfe_u32 v22, v31, 2, 2\nv_add_u32 v20, v20, v22")
        for e in range(2):
            A(f"v_add_u32 v19, {4*e}, v20\nv_bfe_u32 v22, v19, 1, 2\nv_xor_b32 v22, s26, v22\nv_lshlrev_b32 v19, 7, v19\nv_lshl_add_u32 v19, v22, 5, v19\nv_lshl_add_u32 v19, v21, 3, v19\nv_add_u32 v{24+e}, {PK + 3*4096}, v19")
        A("v_bfe_u32 v20, v31, 3, 1\nv_lshlrev_b32 v20, 9, v20\nv_lshrrev_b32 v21, 4, v31\nv_lshl_add_u32 v20, v21, 7, v20\nv_and_b32 v21, 7, v31\nv_lshl_add_u32 v22, v21, 4, v20")
    def g1_scalars():
        A("s_and_b32 s27, s2, 1\ns_lshl_b32 s27, s27, 2\ns_lshr_b32 s28, s2, 3\ns_and_b32 s34, s28, 3\ns_add_u32 s27, s27, s34")
        A("s_bfe_u32 s34, s2, 0x20001\ns_lshl_b32 s34, s34, 3\ns_lshr_b32 s28, s28, 2\ns_add_u32 s28, s28, s34")
        A(f"s_lshr_b32 s35, s26, 1\ns_and_b32 s34, s26, 1\ns_mul_i32 s21, s35, {32*7168}\ns_mul_i32 s22, s35, 14336\ns_mul_i32 s36, s34, 7168\ns_add_u32 s22, s22, s36")
        A("s_cmp_eq_u32 s34, 0\ns_cselect_b32 s12, s4, s6\ns_cselect_b32 s13, s5, s7")
        A("s_mul_i32 s35, s28, 224\ns_add_u32 s12, s12, s35\ns_addc_u32 s13, s13, 0")
        A(f"s_sub_u32 s14, {1024*7168}, s35\ns_mov_b32 s15, 0x20000")
        A("s_lshr_b32 s61, s2, 3\ns_lshr_b32 s62, s61, 2\ns_add_u32 s61, s61, s62\ns_mul_i32 s61, s61, s60")
        for r in range(4):
            A(f"s_add_u32 s62, s61, {r}\ns_and_b32 s62, s62, 3\ns_mul_i32 s{76+r}, s62, {2*KP}\ns_mul_i32 s62, s62, {64*7168}\ns_add_u32 s{64+r}, s62, s21")
        A("s_mov_b32 s68, 0\ns_mov_b32 s69, 0\ns_mov_b32 s21, s64\ns_mov_b32 s20, s76")
    vm = VmTrack(); vt = VmTrack()
    def xload(t, x, emit=True):
        if emit:
            A(f"buffer_load_dwordx4 {ar(XR + (t%NX)*16 + x*4, 4)}, v22, s[8:11], s20 offen offset:{x*1024}")
            if x == 3:
                if t % 2 == 1:
                    r = ((t+1)//2) % 4
                    if r == 0: A(f"s_add_u32 s69, s69, {8*KP}")
                    A(f"s_add_u32 s20, s69, s{76+r}")
                else: A(f"s_add_u32 s20, s20, {KP}")
        else:
            vm.issue(("X", t)); vt.issue(("X", t))
    def dma(s, i, emit=True):
        if emit:
            if i % 4 == 0:
                A(f"s_add_u32 m0, s22, {(s%4)*SLOT + i*1024}")
                A("s_nop 0")
            A(f"buffer_load_dwordx4 v{4+i}, s[12:15], s21 offen offset:{(i%4)*1024} lds")
            if i == 6:
                r = (s+1) % 4
                if r == 0: A(f"s_add_u32 s68, s68, {4*64*7168}")
                A(f"s_add_u32 s21, s68, s{64+r}")
        else:
            vm.issue(("W", s)); vt.issue(("W", s))
    def both(fn, *a):
        fn(*a, True); fn(*a, False)
    def wpre():
        for s_ in range(NWPRE):
            for i in range(7): dma(s_, i, True)
    def ln_consts():
        A(f"v_lshlrev_b32 v15, 5, v16\nv_add_u32 v15, {LN_LDS}, v15\ns_lshl_b32 s34, s26, 3\nv_add_u32 v14, s34, v15")
        A(f"s_mov_b32 s38, 0x3f803f80\ns_mov_b32 s39, {f2u(1e-5)}\ns_mov_b32 s48, {f2u(1.0/1024)}")
        srd(A, 44, 86, XFB, O_XN)
    def tsum(i, store=None):
        for e in range(4*i, 4*i+4):
            A(f"v_lshlrev_b32 v{Y}, 16, v{RB+e}\nv_and_b32 v{Y+1}, 0xffff0000, v{RB+e}")
            A(f"v_lshlrev_b32 v{Y+2}, 16, v{RC+e}\nv_and_b32 v{Y+3}, 0xffff0000, v{RC+e}")
            A(f"v_pk_add_f32 {vr(Y,2)}, {vr(Y,2)}, {vr(Y+2,2)}")
            A(f"v_pk_add_f32 {vr(X+2*e,2)}, {vr(X+2*e,2)}, {vr(Y,2)}")
            A(f"v_cvt_pk_bf16_f32 v{RX+e}, v{X+2*e}, v{X+2*e+1}")
    def tloads():
        for i in range(4):
            A(f"buffer_load_dwordx4 {vr(RB+4*i,4)}, v12, s[8:11], s{29+i} offen")
            A(f"buffer_load_dwordx4 {vr(RC+4*i,4)}, v12, s[40:43], s{29+i} offen")
    def unstash_x():
        for i in range(16):
            A(f"v_accvgpr_read_b32 v{RX+i}, a{AX+i}")
        for i in range(16):
            A(f"v_lshlrev_b32 v{X+2*i}, 16, v{RX+i}\nv_and_b32 v{X+2*i+1}, 0xffff0000, v{RX+i}")
    CB = 57344; UP = 4608; KB = CB + 18432; KW = 8320; OB = 4160; YB = KB + 4*KW
    CA = 32; SK = 64; CT = 80; AD = 96; QR = 112
    ST("start")
    lane(A, 31)
    A("v_lshlrev_b32 v3, 4, v31")
    A("s_lshl_b32 s27, s2, 2\ns_add_u32 s27, s27, s26")
    A("s_lshl_b32 s28, s27, 12\ns_add_u32 s16, s8, s28\ns_addc_u32 s17, s9, 0\ns_mov_b32 s18, 4096\ns_mov_b32 s19, 0x20000")
    for i in range(4): A(f"buffer_load_dwordx4 {vr(SK+4*i,4)}, v3, s[16:19], 0 offen offset:{1024*i}")
    A(f"s_mul_i32 s28, s27, {UTP}\ns_add_u32 s28, s28, {WS_UT}\ns_add_u32 s40, s24, s28\ns_addc_u32 s41, s25, 0\ns_mov_b32 s42, 4096\ns_mov_b32 s43, 0x20000")
    A(f"s_mul_i32 s29, s26, {UP}\ns_add_u32 s29, s29, {CB}\ns_mov_b32 m0, s29\ns_mul_i32 s30, s26, {KW}\ns_add_u32 s30, s30, {KB}")
    for i in range(4): A(f"buffer_load_dwordx4 v3, s[40:43], 0 offen offset:{1024*i} lds")
    A("s_lshl_b32 s28, s2, 3\ns_add_u32 s10, s10, s28\ns_addc_u32 s11, s11, 0\ns_load_dwordx2 s[44:45], s[10:11], 0")
    A("v_and_b32 v16, 15, v31\nv_lshrrev_b32 v17, 4, v31")
    A("v_lshlrev_b32 v100, 4, v17\nv_lshlrev_b32 v18, 5, v16\nv_sub_u32 v100, v100, v18\nv_add_u32 v100, 480, v100\nv_add_u32 v100, s29, v100")
    A("v_add_u32 v101, s30, v3")
    A(f"v_and_b32 v18, 1, v16\nv_mul_u32_u24 v18, {OB+2}, v18\nv_lshl_add_u32 v18, v16, 1, v18\nv_lshl_add_u32 v18, v17, 4, v18\nv_add_u32 v102, s30, v18")
    for k in range(1, 4): A(f"v_add_u32 v{102+k}, {1024*k}, v102")
    A("v_mov_b32 v110, 0\nv_mov_b32 v111, 0\nv_lshlrev_b32 v18, 3, v31\nv_add_u32 v19, s29, v18")
    A("ds_write_b64 v19, v[110:111] offset:4096")
    A(f"v_add_u32 v19, s30, v18\ns_mov_b64 exec, 15\nds_write_b64 v19, v[110:111]\nds_write_b64 v19, v[110:111] offset:{OB}\ns_mov_b64 exec, -1")
    A(f"s_lshl_b32 s28, s26, 12\ns_add_u32 s28, s28, {YB}\nv_lshlrev_b32 v107, 5, v16\nv_lshl_add_u32 v107, v17, 3, v107\nv_add_u32 v107, s28, v107")
    A(f"s_lshl_b32 s28, s26, 8\ns_add_u32 s28, s28, {YB}\nv_lshl_add_u32 v108, v31, 2, s28\ns_lshl_b32 s28, s26, 10\nv_add_u32 v109, s28, v3")
    A("v_lshlrev_b32 v18, 3, v17\nv_add_u32 v18, v18, v16\nv_sub_u32 v110, 15, v18")
    tg_map(A)
    srd(A, 16, 80, 4 << 20)
    g1_vectors()
    g1_scalars()
    late = [lambda i=i: A(f"buffer_load_dwordx4 {vr(QR+4*i,4)}, v13, s[16:19], s33 offen offset:{128*i}") for i in range(4)]
    late += [lambda s_=s_, i=i: dma(s_, i, True) for s_ in range(NWPRE) for i in range(7)]
    for i in range(32): A(f"v_mov_b32 v{CA+i}, 0")
    A("s_waitcnt lgkmcnt(0)")
    A("s_cmp_lt_u32 s26, 2\ns_cselect_b32 s44, s44, s45\ns_and_b32 s45, s26, 1\ns_lshl_b32 s45, s45, 4\ns_lshr_b32 s44, s44, s45\ns_and_b32 s44, s44, 0xffff")
    A("v_and_b32 v111, 1, v110\nv_lshlrev_b32 v111, 4, v111\nv_lshlrev_b32 v111, v111, s44\nv_ashrrev_i32 v110, 1, v110")
    for j in range(4):
        A(f"v_cmp_eq_u32 vcc, {j}, v110\ns_nop 1\nv_cndmask_b32 v{AD+j}, 0, v111, vcc")
    A(f"s_waitcnt vmcnt(4)")
    ST("cv_ssm")
    for i in range(4):
        A(f"ds_write_b128 v101, {vr(SK+4*i,4)} offset:{OB+32+1024*i}")
    for i in range(4):
        t = CT + 8*(i % 2)
        if i < 3: A(f"v_readfirstlane_b32 s34, v{SK+4*(i+1)}\ns_nop 1\nv_mov_b32 v{t+4}, s34")
        else: A(f"v_mov_b32 v{t+4}, 0")
        A(f"s_nop 1\nv_mov_b32_dpp v{t+4}, v{SK+4*i} wave_shl:1 row_mask:0xf bank_mask:0xf")
        for j in range(4):
            hi = f"v{SK+4*i+j+1}" if j < 3 else f"v{t+4}"
            A(f"v_alignbyte_b32 v{t+j}, {hi}, v{SK+4*i+j}, 2")
        A(f"ds_write_b128 v101, {vr(t,4)} offset:{32+1024*i}")
    A(f"v_lshlrev_b32 v{CT+7}, 16, v{SK}\ns_mov_b64 exec, 1\nds_write_b32 v101, v{CT+7} offset:28\ns_mov_b64 exec, -1")
    A(f"s_waitcnt vmcnt(0) lgkmcnt(0)")
    def creads(r):
        pb = (r % 2)*64
        L = []
        for k in range(8):
            m = 8*k + r; o = (m % 16)*16
            L.append(f"ds_read_b128 {ar(pb + 32 + 4*k, 4)}, v100 offset:{3584 - 64*(8*k - r)}")
            L.append(f"ds_read2_b32 {ar(pb + 4*k, 2)}, v{102 + m//16} offset0:{o} offset1:{o+1}")
            L.append(f"ds_read2_b32 {ar(pb + 4*k + 2, 2)}, v{102 + m//16} offset0:{o+2} offset1:{o+3}")
        return L
    for ins in creads(0): A(ins)
    cnt = 0
    for r in range(8):
        A("s_waitcnt lgkmcnt(0)")
        pb = (r % 2)*64
        nxt = creads(r+1) if r < 7 else []
        seq = [(nb, ar(pb + 4*(nb-q1), 4), q1) for q1 in range(8) for nb in range(q1, 8)]
        if r == 0: seq += [(q1, vr(AD, 4), q1) for q1 in range(8)]
        for nb, a, q1 in seq:
            A(f"v_mfma_f32_16x16x32_bf16 {vr(CA+4*nb,4)}, {a}, {ar(pb + 32 + 4*q1, 4)}, {vr(CA+4*nb,4)}")
            if nxt: A(nxt.pop(0))
            cnt += 1
            if late and cnt % lstep == 0: late.pop(0)()
    assert not late
    ST("cv_mfma")
    A(f"s_mul_i32 s34, s2, {YGS}\ns_add_u32 s34, s34, {WS_Y}\ns_add_u32 s40, s24, s34\ns_addc_u32 s41, s25, 0\ns_mov_b32 s42, 16384\ns_mov_b32 s43, 0x20000")
    A("s_mov_b32 s34, 0x05040100\ns_mov_b32 s35, 0x07060302\ns_nop 4")
    for nb in range(8):
        A(f"v_cvt_pk_bf16_f32 v{CT+2*nb}, v{CA+4*nb}, v{CA+4*nb+1}\nv_cvt_pk_bf16_f32 v{CT+2*nb+1}, v{CA+4*nb+2}, v{CA+4*nb+3}")
        A(f"ds_write_b64 v107, {vr(CT+2*nb,2)} offset:{512*nb}")
    A("s_waitcnt lgkmcnt(0)\ns_barrier")
    for c in range(4):
        for ch in range(4): A(f"ds_read_b32 v{SK+4*c+ch}, v108 offset:{ch*4096 + 1024*c}")
    for c in range(4):
        A(f"s_waitcnt lgkmcnt({12-4*c})")
        o = CA + 4*c; b = SK + 4*c
        A(f"v_perm_b32 v{o}, v{b+1}, v{b}, s34\nv_perm_b32 v{o+1}, v{b+3}, v{b+2}, s34")
        A(f"v_perm_b32 v{o+2}, v{b+1}, v{b}, s35\nv_perm_b32 v{o+3}, v{b+3}, v{b+2}, s35")
        A(f"s_mov_b32 s36, {4096*c}\nbuffer_store_dwordx4 {vr(o,4)}, v109, s[40:43], s36 offen {sf}")
    ST("cv_stored")
    A(f"s_waitcnt vmcnt({7*NWPRE + 4})")
    for i in range(16): A(f"v_mov_b32 v{RX+i}, v{QR+i}")
    A(f"s_getpc_b64 s[50:51]\n{name}_pc:\ns_add_u32 s50, s50, {name}_stats-{name}_pc\ns_addc_u32 s51, s51, 0")
    ln_consts()
    A("s_swappc_b64 s[54:55], s[50:51]")
    A(f"v_lshlrev_b32 v19, 2, v18\nv_add_u32 v19, v19, v17\nv_mul_u32_u24 v19, {2*YGS}, v19\nv_lshl_add_u32 v19, v16, 3, v19\nv_add_u32 v20, {YGS}, v19")
    A(f"s_mul_i32 s34, s26, {64*YGS}\ns_lshl_b32 s35, s3, 6\ns_add_u32 s34, s34, s35\ns_add_u32 s35, s34, {16*YGS}\ns_add_u32 s36, s34, {32*YGS}\ns_add_u32 s37, s34, {48*YGS}")
    srd(A, 40, 24, 256*YGS, WS_Y)
    A("s_waitcnt vmcnt(0)\ns_barrier")
    ST("y_drained")
    A(f"s_cmp_lg_u32 s26, 0\ns_cbranch_scc1 {name}_yw")
    A(f"s_and_b32 s98, s2, {yng-1}\ns_lshl_b32 s98, s98, 7\ns_add_u32 s98, s98, {F_Y1 << 10}\ns_mov_b32 s99, {(F_Y1+4) << 10}")
    A("v_mov_b32 v26, 0\nv_mov_b32 v27, 1\ns_mov_b64 exec, 1")
    A("buffer_atomic_add v27, v26, s[88:91], s98 offen sc0 sc1")
    A("s_waitcnt vmcnt(0)\nv_readfirstlane_b32 s96, v27")
    A(f"s_cmp_lg_u32 s96, {256//yng - 1}\ns_cbranch_scc1 {name}_yp")
    A("v_mov_b32 v27, 1\nbuffer_atomic_add v27, v26, s[88:91], s99 offen sc0 sc1")
    A("s_waitcnt vmcnt(0)\nv_readfirstlane_b32 s96, v27")
    A(f"s_cmp_lg_u32 s96, {yng - 1}\ns_cbranch_scc1 {name}_yp")
    A(f"s_mov_b64 exec, 0xffff\nv_mov_b32 v27, 1\nv_lshlrev_b32 v26, 10, v31\ns_mov_b32 s99, {F_Y2 << 10}\nbuffer_store_dword v27, v26, s[88:91], s99 offen sc1")
    A(f"{name}_yp:")
    A(f"s_mov_b64 exec, -1\ns_lshr_b32 s98, s2, 4\ns_add_u32 s98, s98, {F_Y2}\ns_lshl_b32 s98, s98, 10\nv_mov_b32 v26, 0\ns_mov_b32 s95, 0x200000")
    A(f"{name}_yl:\nbuffer_load_dword v27, v26, s[88:91], s98 offen sc1\ns_waitcnt vmcnt(0)\nv_readfirstlane_b32 s96, v27\ns_cmp_eq_u32 s96, 1")
    A(f"s_cbranch_scc1 {name}_yd\ns_sleep {sleep}\ns_sub_u32 s95, s95, 1\ns_cmp_lg_u32 s95, 0\ns_cbranch_scc1 {name}_yl")
    A(f"{name}_yd:\ns_mov_b64 exec, -1\n{name}_yw:")
    for i in range(16):
        A(f"v_lshlrev_b32 v{X+2*i}, 16, v{RX+i}\nv_and_b32 v{X+2*i+1}, 0xffff0000, v{RX+i}")
    A("s_barrier")
    ST("y_go")
    for i in range(4):
        A(f"buffer_load_dwordx2 {vr(RY+4*i,2)}, v19, s[40:43], s{34+i} offen")
        A(f"buffer_load_dwordx2 {vr(RY+4*i+2,2)}, v20, s[40:43], s{34+i} offen")
    A("s_waitcnt vmcnt(0)")
    A(f"s_branch {name}_lngo2")
    A(f"{name}_layer:")
    tg_map(A)
    A(f"s_lshr_b32 s34, s3, 4\ns_add_u32 s34, s34, {F_D}\ns_lshl_b32 s34, s34, 10")
    srd(A, 8, 24, XFB, O_T0)
    srd(A, 40, 24, XFB, O_T1)
    ST("lnb_prewait")
    wait(A, "s34")
    ST("lnb_postwait")
    tloads()
    g1_scalars()
    wpre()
    ln_consts()
    unstash_x()
    for i in range(16): A(f"v_accvgpr_read_b32 v{RY+i}, a{AY+i}")
    for i in range(4):
        A(f"s_waitcnt vmcnt({6-2*i + 7*NWPRE})")
        tsum(i)
    A(f"{name}_lngo:")
    ST("ln_xready")
    A("s_swappc_b64 s[54:55], s[50:51]")
    A(f"{name}_lngo2:")
    ST("ln_go2")
    for i in range(16):
        A(f"v_lshlrev_b32 v{RB}, 16, v{RY+i}\nv_and_b32 v{RB+1}, 0xffff0000, v{RY+i}")
        A(f"v_pk_fma_f32 {vr(Z,2)}, {vr(X+2*i,2)}, {vr(SV+2,2)}, {vr(SV,2)} op_sel_hi:[1,0,0]")
        A(f"v_pk_fma_f32 {vr(X+2*i,2)}, {vr(Z,2)}, {vr(RB,2)}, {vr(X+2*i,2)}")
        A(f"v_cvt_pk_bf16_f32 v{RX+i}, v{X+2*i}, v{X+2*i+1}")
    A("v_add_u32 v14, 256, v14\nv_add_u32 v15, 256, v15")
    A("s_swappc_b64 s[54:55], s[50:51]")
    for i in range(16):
        A(f"v_pk_fma_f32 {vr(Z,2)}, {vr(X+2*i,2)}, {vr(SV+2,2)}, {vr(SV,2)} op_sel_hi:[1,0,0]")
        A(f"v_cvt_pk_bf16_f32 v{RB+i}, v{Z}, v{Z+1}")
        if i % 4 == 3: A(f"buffer_store_dwordx4 {vr(RB+i-3,4)}, v12, s[44:47], s{29+i//4} offen {sf}")
    ST("ln_stored")
    for i in range(16): A(f"v_accvgpr_write_b32 a{AX+i}, v{RX+i}\nv_accvgpr_write_b32 a{AY+i}, v{RY+i}")
    A(f"s_lshr_b32 s49, s3, 5\ns_add_u32 s49, s49, {F_A}\ns_lshl_b32 s49, s49, 10\ns_add_u32 s49, s49, s85")
    A(f"s_lshl_b32 s34, s27, 2\ns_add_u32 s34, s34, s26\ns_mul_i32 s34, s34, {32*KP}")
    A(f"s_add_u32 s8, s86, s34\ns_addc_u32 s9, s87, 0\ns_mov_b32 s10, {32*KP}\ns_mov_b32 s11, 0x20000")
    srd(A, 16, 86, 2048*3584*2, O_H)
    A(f"s_mov_b32 s36, {f2u(c1)}\ns_mov_b32 s37, {f2u(c1)}")
    A(f"s_lshl_b32 s29, s27, 1\ns_lshr_b32 s30, s26, 1\ns_add_u32 s29, s29, s30\ns_mul_i32 s29, s29, {112*8192}")
    A("s_and_b32 s30, s26, 1\ns_lshl_b32 s30, s30, 12\ns_add_u32 s29, s29, s30")
    A("s_mul_i32 s30, s28, 7\ns_and_b32 s31, s28, 1\ns_add_u32 s30, s30, s31\ns_lshl_b32 s30, s30, 12\ns_add_u32 s38, s29, s30")
    A("s_lshr_b32 s30, s28, 1\ns_mul_i32 s30, s30, 7\ns_add_u32 s30, s30, 3\ns_lshl_b32 s30, s30, 13\ns_lshl_b32 s31, s31, 9\ns_add_u32 s39, s29, s30\ns_add_u32 s39, s39, s31")
    A("s_add_u32 s61, s38, 8192\ns_add_u32 s62, s38, 16384")
    A(f"s_lshr_b32 s30, s2, 4\ns_mul_i32 s30, s30, {224*2048}\ns_and_b32 s31, s2, 15\ns_lshl_b32 s31, s31, 7\ns_add_u32 s30, s30, s31\ns_lshl_b32 s31, s26, 14\ns_add_u32 s30, s30, s31")
    A(f"s_add_u32 s56, s52, s30\ns_addc_u32 s57, s53, 0\ns_mul_i32 s58, s60, {6*65536 + 8*2048 - 15*128}\ns_mov_b32 s59, 0x20000")
    A(f"s_mov_b32 s70, 0\ns_lshl_b32 s71, s26, 10\ns_add_u32 s71, s71, {PK}\ns_add_u32 s72, s71, {7*4096}")
    srd(A, 40, 24, 3584*2048, WS_WDP)
    A("s_and_b32 s30, s2, 15\ns_mul_i32 s30, s30, 112\ns_lshr_b32 s31, s2, 4\ns_mul_i32 s31, s31, 7\ns_add_u32 s30, s30, s31\ns_lshl_b32 s30, s30, 2\ns_add_u32 s30, s30, s26\ns_lshl_b32 s44, s30, 10")
    A(f"s_bfe_u32 s45, s2, 0x30001\ns_lshl_b32 s45, s45, 1\ns_lshr_b32 s30, s2, 7\ns_add_u32 s45, s45, s30\ns_add_u32 s45, s45, {F_C}\ns_lshl_b32 s45, s45, 10")
    A(f"s_lshl_b32 s46, s27, 1\ns_lshr_b32 s30, s28, 4\ns_add_u32 s46, s46, s30\ns_add_u32 s46, s46, {F_B}\ns_lshl_b32 s46, s46, 10\ns_add_u32 s46, s46, s85")
    A(f"s_add_u32 s47, s27, {F_A}\ns_lshl_b32 s47, s47, 10\ns_add_u32 s47, s47, s85")
    signal(A, "s49", 32)
    ST("ln_signaled")
    def trread(q, half, s, st, n):
        slot = s % 4
        base = "v1" if slot < 2 else "v2"
        off = (slot % 2)*SLOT + st*14336 + (n & 1)*7168 + (n >> 1)*32 + half*3584
        A(f"ds_read_b64_tr_b16 {ar(WR + (q % R)*4 + half*2, 2)}, {base} offset:{off}")
    frags = [(s, st, n) for s in range(13) for st in range(2) for n in range(14)]
    NQ0 = len(frags)
    def pf(j, sss): return [(13 + ss//2, ss % 2, 2*j + m) for ss in sss for m in range(2)]
    frags += pf(0, [0]) + pf(1, [0]) + pf(0, [1,2,3]) + pf(1, [1,2,3]) + pf(2, [0,1,2,3]) + pf(0, [4,5]) + pf(1, [4,5]) + pf(2, [4,5])
    for j in range(3, 7): frags += pf(j, range(6))
    assert NWPRE in (2, 3)
    for q in range(D):
        for half in range(2): trread(q, half, *frags[q])
    wait(A, "s47")
    ST("g1_go")
    for t in range(2):
        for x in range(4): both(xload, t, x)
    def pack_dma(emit):
        if emit:
            A("s_min_u32 m0, s71, s72\ns_add_u32 s71, s71, 4096")
            A("buffer_load_dwordx4 v11, s[56:59], s70 offen lds\ns_add_u32 s70, s70, 65536")
        else:
            vm.issue("P"); vt.issue("P")
    def stage(s, emit, key, extra=None, bp=barpos):
        for st in range(2):
            t = s*2 + st
            for n in range(14):
                q = t*14 + n
                w = []
                if n == 0:
                    site = ("x", key, st)
                    if not emit: vm.wait(site, [("X", t)])
                    else: w.append(vm.need[site])
                isbar = (st*14 + n == bp)
                if isbar:
                    site = ("b", key)
                    if not emit: vm.wait(site, [("W", s+1)])
                    else: w.append(vm.need[site])
                if emit:
                    ww = [f"vmcnt({min(w)})"] if w and min(w) < 63 else []
                    ww.append(f"lgkmcnt({2*(D-1)})")
                    A("s_waitcnt " + " ".join(ww))
                    if isbar: A("s_barrier")
                for x in range(4):
                    if emit:
                        c = "0" if t == 0 else vr(acc(n,x),4)
                        A(f"v_mfma_f32_16x16x32_bf16 {vr(acc(n,x),4)}, {ar(WR+(q%R)*4,4)}, {ar(XR+(t%NX)*16+x*4,4)}, {c}")
                        if x < 2: trread(q + D, x, *frags[q + D])
                    if extra is not None:
                        if x >= 2:
                            for th in extra.get((st*14 + n, x), []): th(emit)
                    elif x == 2:
                        pos = st*14 + n
                        if pos in xpos:
                            k = xpos.index(pos); xload(2*s + LAX + k//4, k % 4, emit)
                        if pos in wpos: dma(s+2, wpos.index(pos), emit)
                        if pos == ppos: pack_dma(emit)
    def xl(t): return [(xload, t, x) for x in range(4)]
    seq = xl(2)
    if NWPRE == 2: seq += [(dma, 2, i) for i in range(7)]
    for t in range(3, 2 + LAX): seq += xl(t)
    slots = [(n, 2) for n in range(26)]
    extra = {}
    for k, (fn, a, b) in enumerate(seq):
        sl = slots[min(len(slots)-1, k * len(slots) // max(len(seq), 1))]
        extra.setdefault(sl, []).append(lambda emit, fn=fn, a=a, b=b: fn(a, b, emit))
    bp0 = -1 if NWPRE >= 2 else 28 - D - 1
    stage(0, False, "s0", extra, bp0)
    for it in range(3):
        for sp in range(4): stage(1 + it*4 + sp, False, ("L", sp))
    stage(0, True, "s0", extra, bp0)
    ST("g1_s0")
    A("s_mov_b32 s35, 3")
    A(f".p2align 6\n{name}_g1loop:")
    for sp in range(4): stage(9 + sp, True, ("L", sp))
    A(f"s_sub_u32 s35, s35, 1\ns_cmp_lg_u32 s35, 0\ns_cbranch_scc1 {name}_g1loop")
    ST("g1_loopend")
    A(f"s_cmp_eq_u32 s60, 0\ns_cbranch_scc1 {name}_nopk2")
    for u in range(7):
        if u == 3: A(f"ds_read_b64_tr_b16 {ar(PR+4*u,2)}, v24\nds_read_b64_tr_b16 {ar(PR+4*u+2,2)}, v25")
        else: A(f"ds_read_b64_tr_b16 {ar(PR+4*u,2)}, v23 offset:{u*4096}\nds_read_b64_tr_b16 {ar(PR+4*u+2,2)}, v23 offset:{u*4096+2048}")
    for u in range(7):
        A(f"s_waitcnt lgkmcnt({12-2*u})")
        A(f"buffer_store_dwordx4 {ar(PR+4*u,4)}, v3, s[40:43], s44 offen {sf}")
        if u < 6: A("s_add_u32 s44, s44, 4096")
    A(f"{name}_nopk2:")
    xt = list(range(26 + LAX, 32))
    tl_loads = []
    while xt and xt[0] < 30: tl_loads += xl(xt.pop(0))
    tl_loads += [(dma, 15, i) for i in range(7)]
    while xt: tl_loads += xl(xt.pop(0))
    def finish(j, x):
        g = acc(2*j, x)
        if j % 2 == 1:
            return [f"buffer_store_dwordx4 {vr(acc(2*(j-1),x),4)}, v3, s[16:19], {('s38','s61','s62')[j//2]} offen offset:{x*1024} {sf}"]
        if j == 6:
            return [f"v_mov_b32 v{g+2}, v{g}\nv_mov_b32 v{g+3}, v{g+1}\ns_nop 1",
                    f"v_permlane16_swap_b32 v{g}, v{g+2}\nv_permlane16_swap_b32 v{g+1}, v{g+3}"]
        return []
    def dst(j, x): return acc(2*j, x) if j % 2 == 0 else acc(2*(j-1), x) + 2
    def epi_pk(j, x, T):
        g = acc(2*j, x); u = acc(2*j+1, x)
        L = []
        L.append(f"v_pk_mul_f32 {vr(T,2)}, {vr(g,2)}, {vr(g,2)}")
        L.append(f"v_pk_mul_f32 {vr(T+2,2)}, {vr(g+2,2)}, {vr(g+2,2)}")
        L.append(f"v_pk_fma_f32 {vr(T,2)}, {vr(T,2)}, s[36:37], v[28:29]")
        L.append(f"v_pk_fma_f32 {vr(T+2,2)}, {vr(T+2,2)}, s[36:37], v[28:29]")
        L.append(f"v_pk_mul_f32 {vr(T,2)}, {vr(T,2)}, {vr(g,2)}")
        L.append(f"v_pk_mul_f32 {vr(T+2,2)}, {vr(T+2,2)}, {vr(g+2,2)}")
        for e in range(4): L.append(f"v_exp_f32 v{T+e}, v{T+e}")
        L.append(f"v_pk_mul_f32 {vr(u,2)}, {vr(g,2)}, {vr(u,2)}")
        L.append(f"v_pk_add_f32 {vr(T,2)}, {vr(T,2)}, 1.0 op_sel_hi:[1,0]")
        L.append(f"v_pk_add_f32 {vr(T+2,2)}, {vr(T+2,2)}, 1.0 op_sel_hi:[1,0]")
        for e in range(4): L.append(f"v_rcp_f32 v{T+e}, v{T+e}")
        L.append(f"v_pk_mul_f32 {vr(u+2,2)}, {vr(g+2,2)}, {vr(u+2,2)}")
        L.append(f"v_pk_mul_f32 {vr(u,2)}, {vr(u,2)}, {vr(T,2)}")
        L.append(f"v_pk_mul_f32 {vr(u+2,2)}, {vr(u+2,2)}, {vr(T+2,2)}")
        d = dst(j, x)
        L.append(f"v_cvt_pk_bf16_f32 v{d}, v{u}, v{u+1}")
        L.append(f"v_cvt_pk_bf16_f32 v{d+1}, v{u+2}, v{u+3}")
        return L + finish(j, x)
    class Grp:
        def __init__(s, j, x, T):
            g = acc(2*j, x); u = acc(2*j+1, x); d = dst(j, x)
            s.j, s.x, s.T = j, x, T
            s.ops = []; fin = []
            for e in range(4):
                t = T + e; b = len(s.ops)
                s.ops += [["V", f"v_mul_f32 v{t}, v{g+e}, v{g+e}", []],
                          ["V", f"v_fma_f32 v{t}, v{t}, s36, v28", [b]],
                          ["V", f"v_mul_f32 v{t}, v{t}, v{g+e}", [b+1]],
                          ["T", f"v_exp_f32 v{t}, v{t}", [b+2]],
                          ["V", f"v_add_f32 v{t}, 1.0, v{t}", [b+3]],
                          ["T", f"v_rcp_f32 v{t}, v{t}", [b+4]],
                          ["V", f"v_mul_f32 v{u+e}, v{g+e}, v{u+e}", []],
                          ["V", f"v_mul_f32 v{u+e}, v{u+e}, v{t}", [b+5, b+6]]]
                fin.append(b+7)
            gdeps = [i for e in range(4) for i in (8*e+2, 8*e+6)]
            s.ops.append(["V", f"v_cvt_pk_bf16_f32 v{d}, v{u}, v{u+1}", fin[:2] + gdeps])
            s.ops.append(["V", f"v_cvt_pk_bf16_f32 v{d+1}, v{u+2}, v{u+3}", fin[2:] + gdeps])
            n = len(s.ops)
            for f in finish(j, x): s.ops.append(["F", f, [n-2, n-1]])
            s.done = [None]*len(s.ops)
        def ready(s, types, now):
            for i, (ty, tx, dp) in enumerate(s.ops):
                if s.done[i] is None and ty in types and all(s.done[k] is not None and s.done[k] + (2 if s.ops[k][0] == "T" else 1) <= now for k in dp):
                    return i
            return None
        def finished(s): return all(d is not None for d in s.done)
    tail = frags[NQ0:]
    last_pos = {}
    for p, (s_, st_, n_) in enumerate(tail): last_pos[n_ >> 1] = p
    done_at = {p: j for j, p in last_pos.items()}
    first_use = {}
    for p, (s_, st_, n_) in enumerate(tail): first_use.setdefault((s_-13)*2 + st_, p)
    bar14 = first_use[2] - D; bar15 = first_use[4] - D
    pending = []; active = []; temps = [12, 16]
    mi = 0; now = 0
    for p, (s_, st_, n_) in enumerate(tail):
        q = NQ0 + p
        ss = (s_-13)*2 + st_
        w = []; cands = []
        if first_use[ss] == p: vt.wait(("t", ss), [("X", 26 + ss)]); cands.append(vt.need[("t", ss)])
        if p == bar14: vt.wait("tb14", [("W", 14)]); cands.append(vt.need["tb14"])
        if p == bar15: vt.wait("tb15", [("W", 15)]); cands.append(vt.need["tb15"])
        if cands: w.append(f"vmcnt({min(cands)})")
        if p % 2 == 0:
            rem = len(tail) - p - 2
            w.append(f"lgkmcnt({min(2*(D-2), 2*rem)})")
        if w: A("s_waitcnt " + " ".join(w))
        if p == bar14 or p == bar15: A("s_barrier")
        if p == bar15:
            A(f"s_cmp_eq_u32 s60, 0\ns_cbranch_scc1 {name}_noc")
            post(A, ["s45"])
            A(f"{name}_noc:")
        for x in range(4):
            A(f"v_mfma_f32_16x16x32_bf16 {vr(acc(n_,x),4)}, {ar(WR+(q%R)*4,4)}, {ar(XR+((26+ss)%NX)*16+x*4,4)}, {vr(acc(n_,x),4)}")
            mi += 1; now += 1
            if x < 2 and p + D < len(tail): trread(q + D, x, *tail[p + D]); now += 1
            while pending and pending[0][0] <= mi and temps and len(active) < 2:
                _, j, xx = pending.pop(0); active.append(Grp(j, xx, temps.pop(0)))
            if x >= 2 and tl_loads and (x == 2 or p % 2 == 0):
                fn, a_, b_ = tl_loads.pop(0); both(fn, a_, b_)
            pat = slots_pat[x]
            for ch in {"V": ["V"], "T": ["TV"], "A": ["TV"], "": []}[pat]:
                for ty in ch:
                    hit = None
                    for g in active:
                        i = g.ready(ty + ("F" if ty == "V" else ""), now)
                        if i is not None: hit = (g, i); break
                    if hit:
                        g, i = hit; A(g.ops[i][1]); g.done[i] = now; now += 1
                        if "buffer_store" in g.ops[i][1]: vt.issue("S")
                        break
            for g in list(active):
                if g.finished(): active.remove(g); temps.append(g.T)
        if p in done_at:
            j = done_at[p]
            for x in range(4): pending.append((mi + 5 + x, j, x))
    A("s_nop 7")
    ST("g1_mfmaend")
    now += 8
    while active:
        prog = False
        for g in list(active):
            i = g.ready("VTF", now)
            if i is not None: A(g.ops[i][1]); g.done[i] = now; now += 1; prog = True
            if g.finished(): active.remove(g)
        if not prog: A("s_nop 0"); now += 1
    for k, (_, j, xx) in enumerate(pending):
        for ins in epi_pk(j, xx, 12 + 4*(k % 2)): A(ins)
    A("s_mov_b32 exec_lo, 0xffff\ns_mov_b32 exec_hi, 0xffff")
    for x in range(4):
        A(f"buffer_store_dwordx4 {vr(acc(12,x),4)}, v30, s[16:19], s39 offen offset:{x*1024} {sf}")
    A("s_mov_b64 exec, -1")
    ST("g1_stored")
    ACC2 = 64
    def acc2(x, j): return ACC2 + (x*2 + j)*4
    WRG = 0; NW = 8; HR = 64; R2 = 8; SLOT2 = 32768; D2 = g2D; LW = g2LW
    A("s_and_b32 s33, s2, 1")
    A("s_bfe_u32 s27, s2, 0x20001\ns_lshl_b32 s27, s27, 2\ns_bfe_u32 s29, s2, 0x20003\ns_add_u32 s27, s27, s29\ns_lshr_b32 s28, s2, 5")
    A("v_lshlrev_b32 v128, 4, v31\nv_add_u32 v129, 4096, v128")
    A(f"v_mov_b32 v130, v128\nv_add_u32 v131, {2*SLOT2}, v128")
    A(f"s_mul_i32 s30, s33, 56\ns_mul_i32 s29, s27, 112\ns_add_u32 s29, s29, s30\ns_add_u32 s29, s29, s26\ns_lshl_b32 s29, s29, 13\ns_add_u32 s29, s29, {O_H}")
    A(f"s_lshl_b32 s31, s28, 1\ns_lshr_b32 s32, s26, 1\ns_add_u32 s31, s31, s32\ns_mul_i32 s31, s31, 112\ns_add_u32 s31, s31, s30\ns_lshl_b32 s31, s31, 12")
    A(f"s_and_b32 s32, s26, 1\ns_lshl_b32 s32, s32, 11\ns_add_u32 s31, s31, s32\ns_add_u32 s31, s31, {WS_WDP}")
    A("s_lshl_b32 s22, s26, 13")
    A(f"s_sub_u32 s34, {56*8192}, s22\ns_sub_u32 s32, {56*4096}, s32")
    A("s_mov_b32 s20, 0\ns_mov_b32 s21, 0")
    A(f"s_add_u32 s8, s86, s29\ns_addc_u32 s9, s87, 0\ns_mov_b32 s10, s34\ns_mov_b32 s11, 0x20000")
    A(f"s_add_u32 s12, s24, s31\ns_addc_u32 s13, s25, 0\ns_mov_b32 s14, s32\ns_mov_b32 s15, 0x20000")
    A("v_and_b32 v12, 15, v31\nv_bfe_u32 v13, v31, 4, 1\nv_lshrrev_b32 v14, 5, v31\nv_lshl_add_u32 v13, v13, 1, v14")
    A("v_and_b32 v132, 7, v12\nv_lshlrev_b32 v132, 4, v132\nv_lshl_add_u32 v132, v13, 7, v132\nv_lshrrev_b32 v12, 3, v12\nv_lshl_add_u32 v132, v12, 9, v132\nv_add_u32 v133, %d, v132" % (32*KP))
    A("s_lshl_b32 s29, s27, 6\ns_lshl_b32 s30, s28, 2\ns_add_u32 s29, s29, s30\ns_add_u32 s29, s29, s26\ns_mul_i32 s36, s29, %d" % KP)
    A(f"s_add_u32 s23, s22, {2*SLOT2}\ns_lshl_b32 s37, s22, 1\ns_add_u32 s37, s37, {2*SLOT2}")
    A(f"s_and_b32 s47, s27, 14\ns_add_u32 s47, s47, s33\ns_add_u32 s47, s47, {F_B}\ns_lshl_b32 s47, s47, 10\ns_add_u32 s47, s47, s85")
    A(f"s_lshl_b32 s45, s28, 1\ns_add_u32 s45, s45, s33\ns_add_u32 s45, s45, {F_C}\ns_lshl_b32 s45, s45, 10")
    A(f"s_add_u32 s49, s27, {F_D}\ns_lshl_b32 s49, s49, 10\ns_add_u32 s49, s49, s85")
    A(f"s_mul_i32 s29, s33, {O_T1 - O_T0}\ns_add_u32 s29, s29, {O_T0}")
    A(f"s_add_u32 s16, s86, s29\ns_addc_u32 s17, s87, 0\ns_mov_b32 s18, {XFB}\ns_mov_b32 s19, 0x20000")
    signal(A, "s46", 16)
    ST("g1_signaled")
    A(f"s_cmp_eq_u32 s60, 0\ns_cbranch_scc1 {name}_nocw")
    wait(A, "s45", 16)
    A(f"{name}_nocw:")
    vm2 = VmTrack()
    def wload(t, j, emit):
        if emit:
            A(f"buffer_load_dwordx4 {ar(WRG + (t%NW)*8 + j*4, 4)}, v128, s[12:15], s21 offen offset:{j*1024}")
            if j == 1: A("s_add_u32 s21, s21, 4096")
        else: vm2.issue(("W", t))
    def hdma(s, i, emit, m0=None):
        if emit:
            if i % 4 == 0:
                A(m0(i)); A("s_nop 0")
            A(f"buffer_load_dwordx4 v{128 + i//4}, s[8:11], s20 offen offset:{(i%4)*1024} lds")
            if i == 7: A("s_add_u32 s20, s20, 32768")
        else: vm2.issue(("H", s))
    for t in range(LW):
        for j in range(2): wload(t, j, True); wload(t, j, False)
    for i in range(ACC2, ACC2 + 64): A(f"v_mov_b32 v{i}, 0")
    wait(A, "s47")
    ST("g2_go")
    for s_ in range(2):
        for i in range(8):
            hdma(s_, i, True, m0=lambda i: f"s_add_u32 m0, s22, {s_*SLOT2 + i*1024}"); hdma(s_, i, False)
    def hread(q):
        base = "v130" if q < 64 else "v131"
        A(f"ds_read_b128 {ar(HR + (q % R2)*4, 4)}, {base} offset:{(q % 64)*1024}")
    vm2.wait("pro", [("H", 0)])
    A(f"s_waitcnt vmcnt({vm2.need['pro']})\ns_barrier")
    for q in range(D2): hread(q)
    A("s_mov_b32 s35, 7")
    def body(it, emit):
        for sp in range(2):
            s = it*2 + sp
            for st in range(4):
                t = s*4 + st
                for x in range(8):
                    pos = st*8 + x; q = sp*32 + pos
                    w = []
                    if x == 0:
                        site = ("w", sp, st)
                        if emit: w.append(vm2.need[site])
                        else: vm2.wait(site, [("W", t)])
                    if pos == g2bar:
                        site = ("b", sp)
                        if emit: w.append(vm2.need[site])
                        else: vm2.wait(site, [("H", s+1)])
                    if emit:
                        ww = [f"vmcnt({min(w)})"] if w else []
                        if x % 2 == 0: ww.append(f"lgkmcnt({D2-2})")
                        if ww: A("s_waitcnt " + " ".join(ww))
                        if pos == g2bar: A("s_barrier")
                    for j in range(2):
                        if emit:
                            A(f"v_mfma_f32_16x16x32_bf16 {vr(acc2(x,j),4)}, {ar(WRG+(t%NW)*8+j*4,4)}, {ar(HR+(q%R2)*4,4)}, {vr(acc2(x,j),4)}")
                            if j == 0: hread(q + D2)
                        if j == 1:
                            if pos in hpos: hdma(s+2, hpos.index(pos), emit, m0=lambda i: f"s_add_u32 m0, s23, {sp*SLOT2 + i*1024}")
                            if x in (2, 5): wload(t + LW, (2, 5).index(x), emit)
        if emit:
            A("v_swap_b32 v130, v131\ns_sub_u32 s23, s37, s23")
    for it in range(7): body(it, False)
    A(f".p2align 6\n{name}_g2loop:")
    body(0, True)
    A(f"s_sub_u32 s35, s35, 1\ns_cmp_lg_u32 s35, 0\ns_cbranch_scc1 {name}_g2loop")
    ST("g2_loopend")
    for x in range(8):
        a = acc2(x, 0); r = 32 + 4*x
        for e in range(4): A(f"v_cvt_pk_bf16_f32 v{r+e}, v{a+2*e}, v{a+2*e+1}")
        if x >= 1:
            pr = r - 4
            A(f"v_permlane16_swap_b32 v{pr}, v{pr+2}\nv_permlane16_swap_b32 v{pr+1}, v{pr+3}")
            A(f"buffer_store_dwordx4 {vr(pr,4)}, v{132 + (x-1)//4}, s[16:19], s36 offen offset:{((x-1)%4)*1024} {sf}")
    A(f"s_nop 1\nv_permlane16_swap_b32 v60, v62\nv_permlane16_swap_b32 v61, v63")
    A(f"buffer_store_dwordx4 v[60:63], v133, s[16:19], s36 offen offset:3072 {sf}")
    A("s_waitcnt lgkmcnt(0)")
    signal(A, "s49", 16)
    ST("g2_signaled")
    A(f"s_cmp_eq_u32 s60, 0\ns_cbranch_scc1 {name}_fin")
    A(f"s_mov_b32 s60, 0\ns_mov_b32 s94, 32\ns_mov_b32 s85, 65536\ns_add_u32 s86, s86, {LSTRIDE}\ns_addc_u32 s87, s87, 0")
    A(f"s_branch {name}_layer")
    A(f"{name}_fin:")
    tg_map(A)
    A(f"s_lshr_b32 s34, s3, 4\ns_add_u32 s34, s34, {F_D}\ns_lshl_b32 s34, s34, 10\ns_add_u32 s34, s34, s85")
    srd(A, 8, 86, XFB, O_T0)
    srd(A, 40, 86, XFB, O_T1)
    srd(A, 16, 82, 4 << 20)
    unstash_x()
    wait(A, "s34")
    ST("fin_go")
    tloads()
    for i in range(4):
        A(f"s_waitcnt vmcnt({6 - 2*i + i})")
        tsum(i)
        A(f"buffer_store_dwordx4 {vr(RX+4*i,4)}, v13, s[16:19], s33 offen offset:{128*i}")
    if stamps:
        A("s_waitcnt vmcnt(0)")
        ST("end")
        srd(A, 8, 24, 1 << 20, WS_STAMP + (1 << 20))
        A("s_lshl_b32 s29, s2, 2\ns_add_u32 s29, s29, s26\ns_lshl_b32 s29, s29, 8\nv_lshlrev_b32 v1, 2, v31")
        A("buffer_store_dword v0, v1, s[8:11], s29 offen")
    A(f"{name}_end:\ns_endpgm")
    A(f"{name}_stats:")
    A("v_mov_b32 v160, 0\nv_mov_b32 v161, 0\nv_mov_b32 v162, 0\nv_mov_b32 v163, 0")
    for i in range(0, 16, 2):
        A(f"v_dot2c_f32_bf16 v160, s38, v{RX+i}\nv_dot2c_f32_bf16 v161, v{RX+i}, v{RX+i}")
        A(f"v_dot2c_f32_bf16 v162, s38, v{RX+i+1}\nv_dot2c_f32_bf16 v163, v{RX+i+1}, v{RX+i+1}")
    A("s_nop 2")
    A("v_pk_add_f32 v[160:161], v[160:161], v[162:163]")
    A("s_nop 1")
    A("v_add_f32_dpp v160, v160, v160 row_ror:8 row_mask:0xf bank_mask:0xf\nv_add_f32_dpp v161, v161, v161 row_ror:8 row_mask:0xf bank_mask:0xf")
    for sw in ("v_permlane16_swap_b32", "v_permlane32_swap_b32"):
        A("v_mov_b32 v162, v160\nv_mov_b32 v163, v161\ns_nop 1")
        A(f"{sw} v160, v162\n{sw} v161, v163")
        A("s_nop 0")
        A("v_pk_add_f32 v[160:161], v[160:161], v[162:163]")
    A(f"ds_write_b64 v14, v[160:161]\ns_waitcnt lgkmcnt(0)\ns_barrier")
    for k in range(2): A(f"ds_read_b128 {vr(Z+4*k,4)}, v15 offset:{16*k}")
    A("s_waitcnt lgkmcnt(0)")
    A(f"v_pk_add_f32 {vr(Z,2)}, {vr(Z,2)}, {vr(Z+2,2)}\nv_pk_add_f32 {vr(Z+4,2)}, {vr(Z+4,2)}, {vr(Z+6,2)}")
    A(f"v_pk_add_f32 v[160:161], {vr(Z,2)}, {vr(Z+4,2)}")
    A("v_mul_f32 v160, s48, v160\nv_mul_f32 v161, s48, v161\nv_fma_f32 v161, -v160, v160, v161\nv_max_f32 v161, 0, v161")
    round_bf16(A, 160); round_bf16(A, 161)
    A("v_add_f32 v161, s39, v161"); round_bf16(A, 161)
    A("v_sqrt_f32 v161, v161\ns_nop 0"); round_bf16(A, 161)
    A("v_rcp_f32 v162, v161\ns_nop 0\nv_mul_f32 v160, -v160, v162")
    A("s_setpc_b64 s[54:55]")
    gen_mega.names = ST.names
    return kernel_desc(name, 256 + 224, 256, 102)
```

```python
import sys
from asmlib import *
from gemm1 import *
from k0 import gen_k0
from mega import gen_mega, MEGA_LDS, WS_FLAG

HEADER = open("interleave_layers__ssm_conv_h3__geglu_ffn__prompt.s.ref").read().split("; Override launch")[0]

def build_all(stamps=False, mg={}, k0={}):
    launches = [HEADER.rstrip("\n"),
        f"; @launch kernel=prep_kernel grid=(256,1,1) block=(256,1,1) lds=16384",
        f"; @launch kernel=main_kernel grid=(256,1,1) block=(256,1,1) lds={MEGA_LDS}"]
    kk = dict(codepf=("code_begin", "code_end"), zero=(WS_FLAG, 131072)); kk.update(k0)
    def last(A):
        A(".p2align 8\ncode_begin:")
        d = gen_mega(A, stamps=stamps, **mg)
        A("code_end:")
        return d
    return wrap(launches, [lambda A: gen_k0(A, stamps=stamps, **kk), last])

if __name__ == "__main__":
    open("interleave_layers__ssm_conv_h3__geglu_ffn__prompt.s", "w").write(build_all())
```

```python
from asmlib import *
from gemm1 import f2u, wrap
WS_UT = 106 << 20
UTP = 4096 + 256
F_K = 128
NOBJ = 144
YGS = 16384 + 128

LSTRIDE = 48 << 20
O_XN, O_H, O_T0, O_T1 = 0, 5 << 20, 20 << 20, 26 << 20
WS_WDP = 32 << 20
WS_Y = 44 << 20
WS_Y = 100 << 20
WS_FLAG = 112 << 20
WS_STAMP = 120 << 20
F_A, F_B, F_D, F_C = 0, 8, 24, 40
F_Y1, F_Y2 = 56, 104
MEGA_LDS = 114688 + 32768
LN_LDS = 114688 + 7*4096

class Stamper:
    def __init__(s, A, on): s.A, s.on, s.n, s.names = A, on, 0, []
    def __call__(s, name):
        if not s.on: return
        s.A(f"s_memrealtime s[92:93]\ns_waitcnt lgkmcnt(0)\ns_add_u32 m0, s94, {s.n}\ns_nop 0\nv_writelane_b32 v0, s92, m0")
        s.names.append(name); s.n += 1

def lane(A, v):
    A(f"v_mbcnt_lo_u32_b32 v{v}, -1, 0\nv_mbcnt_hi_u32_b32 v{v}, -1, v{v}")

_uid = [0]
SLEEP = [1]
NREP = [4]
KPV = [4096]
def signal(A, off, tgt, also=None):
    _uid[0] += 1; u = _uid[0]
    A("s_waitcnt vmcnt(0)\ns_barrier")
    A(f"s_cmp_lg_u32 s26, 0\ns_cbranch_scc1 sig{u}")
    A("v_mov_b32 v26, 0\nv_mov_b32 v27, 1\nv_mov_b32 v20, 1\ns_mov_b64 exec, 1")
    A(f"buffer_atomic_add v27, v26, s[88:91], {off} offen sc0 sc1")
    if also: A(f"buffer_atomic_add v20, v26, s[88:91], {also} offen sc0 sc1")
    A(f"s_mov_b64 exec, -1\nv_lshl_add_u32 v26, v31, 7, 64\nv_add_u32 v26, 64, v26\nv_mov_b32 v19, 1\ns_waitcnt vmcnt({1 if also else 0})\nv_readfirstlane_b32 s96, v27")
    A(f"s_cmp_lg_u32 s96, {tgt-1}\ns_cbranch_scc1 sih{u}")
    A(f"s_mov_b64 exec, {(1<<NREP[0])-1}")
    A(f"buffer_store_dword v19, v26, s[88:91], {off} offen sc1")
    A(f"s_mov_b64 exec, -1\nsih{u}:")
    if also:
        A(f"s_waitcnt vmcnt(0)\nv_readfirstlane_b32 s96, v20\ns_cmp_lg_u32 s96, {tgt-1}\ns_cbranch_scc1 sig{u}")
        A(f"s_mov_b64 exec, {(1<<NREP[0])-1}\nbuffer_store_dword v19, v26, s[88:91], {also} offen sc1\ns_mov_b64 exec, -1")
    A(f"sig{u}:")
MB = NOBJ*1024
def msignal(A, vexpr, soff, n, sync=True):
    _uid[0] += 1; u = _uid[0]
    A(vexpr + "\nv_mov_b32 v27, 1")
    if sync: A("s_waitcnt vmcnt(0)\ns_barrier")
    A(f"s_cmp_lg_u32 s26, 0\ns_cbranch_scc1 sig{u}")
    A(f"s_mov_b64 exec, {hex((1<<n)-1)}\nbuffer_store_dword v27, v26, s[88:91], {soff} offen sc1\ns_mov_b64 exec, -1\nsig{u}:")
def mwait(A, line, n, lay=False, extra=0):
    _uid[0] += 1; u = _uid[0]
    A(f"s_cmp_lg_u32 s26, 0\ns_cbranch_scc1 wt{u}")
    A(f"s_add_u32 s96, s97, {line*128 + extra}" + ("\ns_add_u32 s96, s96, s85" if lay else ""))
    A(f"v_lshlrev_b32 v26, 2, v31\ns_mov_b32 s95, 0x200000\ns_mov_b64 exec, {hex((1<<n)-1)}")
    A(f"wp{u}:\nbuffer_load_dword v27, v26, s[88:91], s96 offen sc1\ns_waitcnt vmcnt(0)\nv_cmp_eq_u32 vcc, 1, v27")
    A(f"s_cmp_eq_u32 vcc_lo, {hex((1<<n)-1)}\ns_cbranch_scc1 wd{u}\ns_sleep {SLEEP[0]}\ns_sub_u32 s95, s95, 1\ns_cmp_lg_u32 s95, 0\ns_cbranch_scc1 wp{u}")
    A(f"wd{u}:\ns_mov_b64 exec, -1\nwt{u}:\ns_barrier")
def post(A, offs):
    _uid[0] += 1; u = _uid[0]
    A(f"s_cmp_lg_u32 s26, 0\ns_cbranch_scc1 sig{u}")
    A("v_mov_b32 v26, 0\nv_mov_b32 v27, 1\ns_mov_b64 exec, 1")
    for o in offs: A(f"buffer_atomic_add v27, v26, s[88:91], {o} offen sc1")
    A(f"s_mov_b64 exec, -1\nsig{u}:")
def wait(A, off, tgt=None):
    _uid[0] += 1; u = _uid[0]
    A(f"s_cmp_lg_u32 s26, 0\ns_cbranch_scc1 wt{u}")
    A(f"v_mov_b32 v26, {'s97' if tgt is None else 0}\ns_mov_b32 s95, 0x200000")
    A(f"wp{u}:\nbuffer_load_dword v27, v26, s[88:91], {off} offen sc1\ns_waitcnt vmcnt(0)\nv_readfirstlane_b32 s96, v27")
    A(f"s_cmp_ge_u32 s96, {1 if tgt is None else tgt}\ns_cbranch_scc1 wt{u}\ns_sleep {SLEEP[0]}\ns_sub_u32 s95, s95, 1\ns_cmp_lg_u32 s95, 0\ns_cbranch_scc1 wp{u}")
    A(f"wt{u}:\ns_barrier")

def round_bf16(A, v):
    A(f"v_cvt_pk_bf16_f32 v{v}, v{v}, v{v}\nv_and_b32 v{v}, 0xffff0000, v{v}")

def tg_map(A):
    A("s_lshr_b32 s3, s2, 4\ns_lshl_b32 s3, s3, 3\ns_and_b32 s29, s2, 7\ns_add_u32 s3, s3, s29\ns_lshl_b32 s3, s3, 1\ns_bfe_u32 s29, s2, 0x10003\ns_add_u32 s3, s3, s29")
    A("v_and_b32 v16, 7, v31\nv_bfe_u32 v17, v31, 3, 2\nv_lshrrev_b32 v18, 5, v31")
    KP = KPV[0]
    A(f"v_mul_u32_u24 v12, {KP}, v18\nv_lshl_add_u32 v12, v17, 7, v12\nv_lshl_add_u32 v12, v16, 4, v12")
    A(f"s_lshr_b32 s29, s3, 3\ns_lshl_b32 s29, s29, 2\ns_add_u32 s29, s29, s26\ns_mul_i32 s29, s29, {8*KP}")
    A("s_bfe_u32 s30, s3, 0x20001\ns_lshl_b32 s30, s30, 10\ns_add_u32 s29, s29, s30\ns_and_b32 s30, s3, 1\ns_lshl_b32 s30, s30, 9\ns_add_u32 s29, s29, s30")
    A(f"s_add_u32 s30, s29, {2*KP}\ns_add_u32 s31, s29, {4*KP}\ns_add_u32 s32, s29, {6*KP}")
    A("v_lshlrev_b32 v13, 11, v16\nv_lshl_add_u32 v13, v18, 6, v13\nv_lshl_add_u32 v13, v17, 4, v13")
    A("s_lshl_b32 s33, s3, 14\ns_lshl_b32 s34, s26, 9\ns_add_u32 s33, s33, s34")

def gen_mega(A, name="main_kernel", stamps=False, sf="sc1", LAX=4, NWPRE=2, w0="early", sleep=4, mbox=True, ytop=False, packtail=False, w1pos=0, pkafter=4, wpf=0, e1=None, e1rows=256, rot=True, lstep=16, ssmpos=1, yng=16, KP=4096, nrep=4,
             wpos=(0,2,4,6,8,10,12), xpos=(15,17,19,20,22,24,25,27), barpos=14, ppos=13, slots_pat=("V","V","T","A"),
             g2D=6, g2P=8, g2T0=1.0, g2rate=1.0, snake=True, g2bar=16, hpos=(0,3,6,9,12,15,18,21)):
    ST = Stamper(A, stamps)
    SLEEP[0] = sleep
    NREP[0] = nrep
    KPV[0] = KP
    XFB = 1024*KP
    kernel_begin(A, name)
    A("s_cmp_ge_u32 s2, 256\ns_cbranch_scc1 %s_end" % name)
    A("s_load_dwordx2 s[80:81], s[0:1], 0")
    A("s_load_dwordx2 s[24:25], s[0:1], 96")
    A("s_load_dwordx4 s[4:7], s[0:1], 56")
    A("s_load_dwordx2 s[52:53], s[0:1], 72")
    A("s_load_dwordx2 s[82:83], s[0:1], 80")
    A("s_load_dwordx8 s[8:15], s[0:1], 8")
    A("s_load_dwordx2 s[16:17], s[0:1], 40")
    A("s_load_dwordx2 s[72:73], s[0:1], 88")
    A("v_lshrrev_b32 v1, 6, v0")
    A("s_mov_b32 s60, 1\ns_mov_b32 s94, 0")
    A("v_readfirstlane_b32 s26, v1")
    KL = 125440
    A("v_and_b32 v31, 63, v0\nv_lshrrev_b32 v19, 3, v0\nv_and_b32 v20, 7, v0\nv_lshlrev_b32 v3, 4, v31")
    A("s_and_b32 s27, s2, 15\ns_lshr_b32 s28, s2, 4\ns_lshl_b32 s29, s28, 18\ns_lshl_b32 s30, s27, 7\ns_add_u32 s29, s29, s30")
    A("v_lshlrev_b32 v248, 13, v19\nv_lshl_add_u32 v248, v20, 4, v248\nv_add_u32 v248, s29, v248")
    A("v_subrev_u32 v249, 6144, v248\nv_subrev_u32 v250, 2048, v248\nv_add_u32 v251, 4096, v248\nv_lshlrev_b32 v252, 6, v20\ns_lshl_b32 s31, s27, 9")
    A("v_sub_u32 v21, 31, v19\nv_lshrrev_b32 v26, 1, v21\nv_xor_b32 v26, v26, v20\nv_and_b32 v21, 1, v21\nv_lshlrev_b32 v21, 3, v21")
    A(f"v_lshl_add_u32 v253, v26, 4, v21\nv_lshl_add_u32 v253, v20, 11, v253\nv_add_u32 v253, {KL}, v253")
    A("s_waitcnt lgkmcnt(0)")
    A("s_mov_b32 s86, s24\ns_mov_b32 s87, s25")
    srd(A, 88, 24, MB + 256*1024, WS_FLAG)
    A("s_mov_b32 s74, 256\ns_mov_b32 s75, 0x20000")
    if mbox: A(f"s_lshl_b32 s97, s2, 10\ns_add_u32 s97, s97, {MB}")
    else: A(f"s_lshr_b32 s97, s2, 3\ns_and_b32 s97, s97, {nrep-1}\ns_add_u32 s97, s97, 1\ns_lshl_b32 s97, s97, 7")
    A("s_mov_b32 s85, 0")
    X = 32; RX = 64; RY = 80; Y = 96; RB = 128; RC = 144; Z = 96; SV = 160
    AX = 192; AY = 208
    c0 = -2.0 * 1.4426950408889634 * 0.7978845608028654
    c1 = c0 * 0.044715
    D = 4; ACC = 32
    def acc(n, x): return ACC + (n*4 + x)*4
    XR = 0; NX = 8; WR = 128; R = 8; PR = 160
    SLOT = 28672; PK = 4*SLOT
    def g1_vectors():
        A("s_and_b32 s27, s2, 1\ns_lshl_b32 s27, s27, 2\ns_lshr_b32 s28, s2, 3\ns_and_b32 s34, s28, 3\ns_add_u32 s27, s27, s34")
        A("s_bfe_u32 s34, s2, 0x20001\ns_lshl_b32 s34, s34, 3\ns_lshr_b32 s28, s28, 2\ns_add_u32 s28, s28, s34")
        A("v_lshlrev_b32 v3, 4, v31")
        A("s_movk_i32 s34, 4682\ns_movk_i32 s35, 7168")
        A("s_and_b32 s36, s28, 1\ns_lshl_b32 s36, s36, 1")
        for i in range(7):
            v = 4 + i
            A(f"v_add_u32 v20, {64*i}, v31")
            A("v_mul_u32_u24 v21, s34, v20\nv_lshrrev_b32 v21, 16, v21")
            A("v_mul_u32_u24 v22, 14, v21\nv_sub_u32 v22, v20, v22")
            A("v_add_u32 v22, s36, v22\nv_subrev_u32 v26, 14, v22\nv_min_u32 v22, v22, v26")
            A("v_bfe_u32 v19, v21, 2, 2\nv_lshlrev_b32 v19, 3, v19\nv_lshrrev_b32 v26, 4, v21\nv_lshl_add_u32 v19, v26, 2, v19\nv_and_b32 v26, 3, v21\nv_add_u32 v19, v19, v26")
            A(f"v_mul_u32_u24 v19, s35, v19\nv_lshl_add_u32 v{v}, v22, 4, v19")
            if (i % 4): A(f"v_subrev_u32 v{v}, {1024*(i%4)}, v{v}")
        A("v_lshrrev_b32 v20, 2, v31\nv_mul_u32_u24 v20, 224, v20\nv_and_b32 v21, 3, v31\nv_lshl_add_u32 v1, v21, 3, v20")
        A(f"v_add_u32 v2, {2*SLOT}, v1")
        A("v_lshrrev_b32 v20, 3, v31\nv_bfe_u32 v21, v31, 1, 2\nv_bfe_u32 v22, v31, 4, 2\nv_xor_b32 v21, v21, v22")
        A("v_and_b32 v22, 1, v31\nv_lshl_add_u32 v21, v21, 1, v22\nv_lshlrev_b32 v21, 4, v21\nv_lshl_add_u32 v11, v20, 11, v21")
        A(f"v_mov_b32 v28, {f2u(c0)}\nv_mov_b32 v29, {f2u(c0)}")
        A("v_and_b32 v30, 15, v31\nv_lshlrev_b32 v30, 4, v30\nv_lshrrev_b32 v20, 5, v31\nv_lshl_add_u32 v30, v20, 8, v30")
        A(f"v_lshrrev_b32 v20, 2, v31\nv_lshlrev_b32 v20, 7, v20\nv_and_b32 v21, 3, v31\nv_lshl_add_u32 v20, v21, 3, v20\nv_add_u32 v20, {PK}, v20")
        A("v_bfe_u32 v22, v31, 3, 2\nv_xor_b32 v22, s26, v22\nv_lshl_add_u32 v23, v22, 5, v20")
        A(f"v_lshrrev_b32 v20, 4, v31\nv_lshlrev_b32 v20, 3, v20\nv_bfe_u32 v22, v31, 2, 2\nv_add_u32 v20, v20, v22")
        for e in range(2):
            A(f"v_add_u32 v19, {4*e}, v20\nv_bfe_u32 v22, v19, 1, 2\nv_xor_b32 v22, s26, v22\nv_lshlrev_b32 v19, 7, v19\nv_lshl_add_u32 v19, v22, 5, v19\nv_lshl_add_u32 v19, v21, 3, v19\nv_add_u32 v{24+e}, {PK + 3*4096}, v19")
        A("v_mul_u32_u24 v20, 43, v31\nv_lshrrev_b32 v20, 7, v20\nv_mul_u32_u24 v19, 3, v20\nv_sub_u32 v19, v31, v19\nv_mul_u32_u24 v20, s35, v20\nv_lshl_add_u32 v21, v19, 7, v20")
        A("v_accvgpr_write_b32 a254, v21")
        A("v_bfe_u32 v20, v31, 3, 1\nv_lshlrev_b32 v20, 9, v20\nv_lshrrev_b32 v21, 4, v31\nv_lshl_add_u32 v20, v21, 7, v20\nv_and_b32 v21, 7, v31\nv_lshl_add_u32 v22, v21, 4, v20")
    def g1_scalars():
        A("s_and_b32 s27, s2, 1\ns_lshl_b32 s27, s27, 2\ns_lshr_b32 s28, s2, 3\ns_and_b32 s34, s28, 3\ns_add_u32 s27, s27, s34")
        A("s_bfe_u32 s34, s2, 0x20001\ns_lshl_b32 s34, s34, 3\ns_lshr_b32 s28, s28, 2\ns_add_u32 s28, s28, s34")
        A(f"s_lshr_b32 s35, s26, 1\ns_and_b32 s34, s26, 1\ns_mul_i32 s21, s35, {32*7168}\ns_mul_i32 s22, s35, 14336\ns_mul_i32 s36, s34, 7168\ns_add_u32 s22, s22, s36")
        A("s_cmp_eq_u32 s34, 0\ns_cselect_b32 s12, s4, s6\ns_cselect_b32 s13, s5, s7")
        A("s_mul_i32 s35, s28, 224\ns_add_u32 s12, s12, s35\ns_addc_u32 s13, s13, 0")
        A(f"s_sub_u32 s14, {1024*7168}, s35\ns_mov_b32 s15, 0x20000")
        A("s_lshr_b32 s61, s2, 3\ns_lshr_b32 s62, s61, 2\ns_add_u32 s61, s61, s62\ns_mul_i32 s61, s61, %s" % ("s60" if rot else "0"))
        for r in range(4):
            A(f"s_add_u32 s62, s61, {r}\ns_and_b32 s62, s62, 3\ns_mul_i32 s{76+r}, s62, {2*KP}\ns_mul_i32 s62, s62, {64*7168}\ns_add_u32 s{64+r}, s62, s21")
        A("s_mov_b32 s68, 0\ns_mov_b32 s69, 0\ns_mov_b32 s21, s64\ns_mov_b32 s20, s76")
    vm = VmTrack(); vt = VmTrack()
    def xload(t, x, emit=True):
        if emit:
            A(f"buffer_load_dwordx4 {ar(XR + (t%NX)*16 + x*4, 4)}, v22, s[8:11], s20 offen offset:{x*1024}")
            if x == 3:
                if t % 2 == 1:
                    r = ((t+1)//2) % 4
                    if r == 0: A(f"s_add_u32 s69, s69, {8*KP}")
                    A(f"s_add_u32 s20, s69, s{76+r}")
                else: A(f"s_add_u32 s20, s20, {KP}")
        else:
            vm.issue(("X", t)); vt.issue(("X", t))
    def dma(s, i, emit=True):
        if emit:
            if i % 4 == 0:
                A(f"s_add_u32 m0, s22, {(s%4)*SLOT + i*1024}")
                A("s_nop 0")
            A(f"buffer_load_dwordx4 v{4+i}, s[12:15], s21 offen offset:{(i%4)*1024} lds")
            if i == 6:
                r = (s+1) % 4
                if r == 0: A(f"s_add_u32 s68, s68, {4*64*7168}")
                A(f"s_add_u32 s21, s68, s{64+r}")
        else:
            vm.issue(("W", s)); vt.issue(("W", s))
    def both(fn, *a):
        fn(*a, True); fn(*a, False)
    def wpre():
        for s_ in range(NWPRE):
            for i in range(7): dma(s_, i, True)
    def ln_consts():
        A(f"v_lshlrev_b32 v15, 5, v16\nv_add_u32 v15, {LN_LDS}, v15\ns_lshl_b32 s34, s26, 3\nv_add_u32 v14, s34, v15")
        A(f"s_mov_b32 s38, 0x3f803f80\ns_mov_b32 s39, {f2u(1e-5)}\ns_mov_b32 s48, {f2u(1.0/1024)}")
        srd(A, 44, 86, XFB, O_XN)
    def tsum(i, store=None):
        for e in range(4*i, 4*i+4):
            A(f"v_lshlrev_b32 v{Y}, 16, v{RB+e}\nv_and_b32 v{Y+1}, 0xffff0000, v{RB+e}")
            A(f"v_lshlrev_b32 v{Y+2}, 16, v{RC+e}\nv_and_b32 v{Y+3}, 0xffff0000, v{RC+e}")
            A(f"v_pk_add_f32 {vr(Y,2)}, {vr(Y,2)}, {vr(Y+2,2)}")
            A(f"v_pk_add_f32 {vr(X+2*e,2)}, {vr(X+2*e,2)}, {vr(Y,2)}")
            A(f"v_cvt_pk_bf16_f32 v{RX+e}, v{X+2*e}, v{X+2*e+1}")
    def tloads():
        for i in range(4):
            A(f"buffer_load_dwordx4 {vr(RB+4*i,4)}, v12, s[8:11], s{29+i} offen")
            A(f"buffer_load_dwordx4 {vr(RC+4*i,4)}, v12, s[40:43], s{29+i} offen")
    def unstash_x():
        for i in range(16):
            A(f"v_accvgpr_read_b32 v{RX+i}, a{AX+i}")
        for i in range(16):
            A(f"v_lshlrev_b32 v{X+2*i}, 16, v{RX+i}\nv_and_b32 v{X+2*i+1}, 0xffff0000, v{RX+i}")
    CB = 57344; UP = 4608; KB = CB + 18432; KW = 8320; OB = 4160; YB = KB + 4*KW
    CA = 32; SK = 64; CT = 80; AD = 96; QR = 112
    ST("start")
    KR = 128; VR = 156; SR = 172; CF = 188; FF = 220; RR = 32; OO = 112
    A(f"s_lshl_b32 s33, s26, 8\ns_add_u32 s33, s33, s2\ns_cmp_ge_u32 s33, {NOBJ//8}\ns_cbranch_scc1 {name}_nz")
    A("s_lshl_b32 s34, s33, 13\nv_lshlrev_b32 v26, 7, v31\nv_mov_b32 v27, 0\nbuffer_store_dword v27, v26, s[88:91], s34 offen sc1")
    A(f"{name}_nz:")
    if mbox:
        A(f"s_cmp_lg_u32 s26, 0\ns_cbranch_scc1 {name}_nzm")
        A("v_mov_b32 v20, 0\nv_mov_b32 v21, 0\nv_mov_b32 v22, 0\nv_mov_b32 v23, 0\nbuffer_store_dwordx4 v[20:23], v3, s[88:91], s97 offen sc1")
        A(f"{name}_nzm:")
    srd(A, 32, 8, 4 << 20); srd(A, 36, 10, 4 << 20); srd(A, 40, 12, 8192)
    kaddr = [("v249", 0), ("v249", 2048), ("v250", 0), ("v248", 0), ("v248", 2048), ("v251", 0), ("v251", 2048)]
    for j in (3, 4, 5, 6): A(f"buffer_load_dwordx4 {vr(KR+4*j,4)}, {kaddr[j][0]}, s[32:35], 0 offen offset:{kaddr[j][1]}")
    for j in range(4): A(f"buffer_load_dwordx4 {vr(VR+4*j,4)}, {kaddr[3+j][0]}, s[36:39], 0 offen offset:{kaddr[3+j][1]}")
    for j in (0, 1, 2): A(f"buffer_load_dwordx4 {vr(KR+4*j,4)}, {kaddr[j][0]}, s[32:35], 0 offen offset:{kaddr[j][1]}")
    for j in range(4): A(f"buffer_load_dwordx4 {vr(SR+4*j,4)}, v252, s[40:43], s31 offen offset:{16*j}")
    srd(A, 56, 24, 1024*UTP, WS_UT)
    A(f"s_lshl_b32 s70, s27, 2\ns_add_u32 s70, s70, s26\ns_mul_i32 s70, s70, {16*UTP}\ns_lshl_b32 s34, s28, 8\ns_sub_u32 s34, 3840, s34\ns_add_u32 s70, s70, s34")
    if mbox: A(f"s_lshl_b32 s98, s27, 14\ns_lshl_b32 s99, s28, 2\ns_add_u32 s98, s98, s99\ns_add_u32 s98, s98, {MB}")
    else: A(f"s_add_u32 s98, s27, {F_K}\ns_lshl_b32 s98, s98, 10\ns_add_u32 s99, s28, {F_K}\ns_lshl_b32 s99, s99, 10")
    A("s_lshl_b32 s27, s2, 2\ns_add_u32 s27, s27, s26")
    A("s_lshl_b32 s28, s27, 12\ns_add_u32 s32, s14, s28\ns_addc_u32 s33, s15, 0\ns_mov_b32 s34, 4096\ns_mov_b32 s35, 0x20000")
    A("s_mov_b32 s48, s32\ns_mov_b32 s49, s33\ns_mov_b32 s50, 4096\ns_mov_b32 s51, 0x20000")
    def ssm_loads():
        for i in range(4): A(f"buffer_load_dwordx4 {vr(SK+4*i,4)}, v3, s[48:51], 0 offen offset:{1024*i}")
    if ssmpos == 0: ssm_loads()
    A(f"s_getpc_b64 s[36:37]\n{name}_pc0:\ns_sub_u32 s36, s36, {name}_pc0-{name}\ns_subb_u32 s37, s37, 0\ns_mov_b32 s38, {name}_codeend-{name}\ns_mov_b32 s39, 0x20000")
    A("s_lshr_b32 s29, s2, 3\ns_lshl_b32 s29, s29, 2\ns_add_u32 s29, s29, s26\ns_lshl_b32 s29, s29, 9\nv_lshlrev_b32 v26, 7, v31")
    A("s_mov_b64 exec, 15\nbuffer_load_dword a255, v26, s[36:39], s29 offen\ns_mov_b64 exec, -1")
    A("v_lshrrev_b32 v19, 4, v31\nv_and_b32 v20, 15, v31\ns_lshl_b32 s29, s26, 1")
    A(f"v_xor_b32 v21, s29, v20\nv_lshlrev_b32 v21, 4, v21\nv_lshl_add_u32 v21, v19, 8, v21\ns_lshl_b32 s29, s26, 12\ns_add_u32 s29, s29, {KL}\nv_add_u32 v254, s29, v21\nv_xor_b32 v255, 16, v254")
    A(f"v_mul_u32_u24 v19, {UTP}, v19\nv_lshl_add_u32 v248, v20, 4, v19")
    A(f"s_mul_i32 s28, s27, {UTP}\ns_add_u32 s28, s28, {WS_UT}\ns_add_u32 s40, s24, s28\ns_addc_u32 s41, s25, 0\ns_mov_b32 s42, 4096\ns_mov_b32 s43, 0x20000")
    A(f"s_mul_i32 s29, s26, {UP}\ns_add_u32 s29, s29, {CB}\ns_mov_b32 s71, s29\ns_mul_i32 s30, s26, {KW}\ns_add_u32 s30, s30, {KB}")
    A("s_lshl_b32 s28, s2, 3\ns_add_u32 s16, s16, s28\ns_addc_u32 s17, s17, 0\ns_load_dwordx2 s[44:45], s[16:17], 0")
    A("v_and_b32 v16, 15, v31\nv_lshrrev_b32 v17, 4, v31")
    A("v_lshlrev_b32 v100, 4, v17\nv_lshlrev_b32 v18, 5, v16\nv_sub_u32 v100, v100, v18\nv_add_u32 v100, 480, v100\nv_add_u32 v100, s29, v100")
    A("v_add_u32 v101, s30, v3")
    A(f"v_and_b32 v18, 1, v16\nv_mul_u32_u24 v18, {OB+2}, v18\nv_lshl_add_u32 v18, v16, 1, v18\nv_lshl_add_u32 v18, v17, 4, v18\nv_add_u32 v102, s30, v18")
    for k in range(1, 4): A(f"v_add_u32 v{102+k}, {1024*k}, v102")
    A("v_mov_b32 v110, 0\nv_mov_b32 v111, 0\nv_lshlrev_b32 v18, 3, v31\nv_add_u32 v19, s29, v18")
    A("ds_write_b64 v19, v[110:111] offset:4096")
    A(f"v_add_u32 v19, s30, v18\ns_mov_b64 exec, 15\nds_write_b64 v19, v[110:111]\nds_write_b64 v19, v[110:111] offset:{OB}\ns_mov_b64 exec, -1")
    A(f"s_lshl_b32 s28, s26, 12\ns_add_u32 s28, s28, {YB}\nv_lshlrev_b32 v107, 5, v16\nv_lshl_add_u32 v107, v17, 3, v107\nv_add_u32 v107, s28, v107")
    A(f"s_lshl_b32 s28, s26, 8\ns_add_u32 s28, s28, {YB}\nv_lshl_add_u32 v108, v31, 2, s28\ns_lshl_b32 s28, s26, 10\nv_add_u32 v109, s28, v3")
    A("v_lshlrev_b32 v18, 3, v17\nv_add_u32 v18, v18, v16\nv_sub_u32 v110, 15, v18")
    tg_map(A)
    srd(A, 16, 80, 4 << 20)
    g1_vectors()
    g1_scalars()
    late = [lambda i=i: A(f"buffer_load_dwordx4 {vr(QR+4*i,4)}, v13, s[16:19], s33 offen offset:{128*i}") for i in range(4)]
    late += [lambda s_=s_, i=i: dma(s_, i, True) for s_ in range(NWPRE) for i in range(7)]
    if e1 is not None:
        nl = e1rows*56*2 // 1024
        A("s_lshl_b32 s34, s2, 2\ns_add_u32 s34, s34, s26\ns_cmp_lt_u32 s34, 512\ns_cselect_b32 s8, s4, s6\ns_cselect_b32 s9, s5, s7")
        A(f"s_mov_b32 s10, {1024*7168}\ns_mov_b32 s11, 0x20000\ns_and_b32 s34, s34, 511\ns_mul_i32 s100, s34, {nl*128}\ns_add_u32 s100, s100, {256*7168}\nv_lshlrev_b32 v19, 7, v31")
        late.insert(e1, lambda: A(f"s_mov_b32 exec_lo, {hex((1<<min(32,nl))-1)}\ns_mov_b32 exec_hi, {hex((1<<max(0,nl-32))-1)}\nbuffer_load_dword a253, v19, s[8:11], s100 offen\ns_mov_b64 exec, -1"))
    A("s_waitcnt lgkmcnt(0)")
    A("s_cmp_lt_u32 s26, 2\ns_cselect_b32 s44, s44, s45\ns_and_b32 s45, s26, 1\ns_lshl_b32 s45, s45, 4\ns_lshr_b32 s44, s44, s45\ns_and_b32 s44, s44, 0xffff")
    A("v_and_b32 v111, 1, v110\nv_lshlrev_b32 v111, 4, v111\nv_lshlrev_b32 v111, v111, s44\nv_ashrrev_i32 v110, 1, v110")
    for j in range(4):
        A(f"v_cmp_eq_u32 vcc, {j}, v110\ns_nop 1\nv_cndmask_b32 v{AD+j}, 0, v111, vcc")
    if mbox:
        A(f"s_cmp_lg_u32 s26, 0\ns_cbranch_scc1 {name}_nz3\ns_waitcnt vmcnt({16 + (4 if ssmpos == 0 else 0)})")
        A("s_and_b32 s34, s2, 1\ns_lshl_b32 s34, s34, 7\nv_mov_b32 v26, 0\nv_mov_b32 v27, 1\ns_mov_b64 exec, 1\nbuffer_atomic_add v27, v26, s[72:75], s34 offen sc1\ns_mov_b64 exec, -1")
        A(f"{name}_nz3:")
    if ssmpos == 1: ssm_loads()
    A(f"s_waitcnt vmcnt({5 if ssmpos < 2 else 1})")
    ST("cv_kv")
    if ssmpos == 2: ssm_loads()
    if not mbox:
        A(f"s_lshl_b32 s34, s26, 8\ns_add_u32 s34, s34, s2\ns_cmp_ge_u32 s34, {NOBJ//8}\ns_cbranch_scc1 {name}_nz2")
        A("v_mov_b32 v26, 0\nv_mov_b32 v27, 1\ns_mov_b64 exec, 1\nbuffer_atomic_add v27, v26, s[72:75], 0 offen sc1\ns_mov_b64 exec, -1")
        A(f"{name}_nz2:")
    for c in range(8):
        for i in range(4):
            src = SR + 2*c + (i >> 1)
            A(f"v_lshlrev_b32 v{CF+i*8+c}, 16, v{src}" if i % 2 == 0 else f"v_and_b32 v{CF+i*8+c}, 0xffff0000, v{src}")
    for dh in range(2):
        for j in range(7):
            for d in range(2):
                A(f"v_lshlrev_b32 v{FF+4*j+2*d}, 16, v{KR+4*j+2*dh+d}\nv_and_b32 v{FF+4*j+2*d+1}, 0xffff0000, v{KR+4*j+2*dh+d}")
        for r in range(4):
            for d in range(2):
                dd = 2*dh + d
                dstp = vr(RR+8*r+2*dd, 2)
                A(f"v_pk_mul_f32 {dstp}, {vr(FF+4*(3+r)+2*d,2)}, {vr(CF+2*dd,2)}")
                for i in range(1, 4):
                    A(f"v_pk_fma_f32 {dstp}, {vr(FF+4*(3+r-i)+2*d,2)}, {vr(CF+i*8+2*dd,2)}, {dstp}")
                A(f"v_lshlrev_b32 v26, 16, v{VR+4*r+dd}\nv_and_b32 v27, 0xffff0000, v{VR+4*r+dd}")
                A(f"v_pk_mul_f32 {dstp}, {dstp}, v[26:27]")
        for c in range(4*dh, 4*dh + 4):
            A(f"v_cvt_pk_bf16_f32 v{OO+2*c}, v{RR+24+c}, v{RR+16+c}\nv_cvt_pk_bf16_f32 v{OO+2*c+1}, v{RR+8+c}, v{RR+c}")
            A(f"ds_write_b64 v253, {vr(OO+2*c,2)} offset:{256*c}")
    A("s_waitcnt lgkmcnt(0)\ns_barrier")
    for i in range(4):
        A(f"ds_read_b128 {vr(KR+4*i,4)}, {'v254' if i < 2 else 'v255'} offset:{1024*i}")
    for i in range(4):
        A(f"s_waitcnt lgkmcnt({3-i})")
        A(f"buffer_store_dwordx4 {vr(KR+4*i,4)}, v248, s[56:59], s70 offen {sf}")
        if i < 3: A(f"s_add_u32 s70, s70, {4*UTP}")
    for i in range(32): A(f"v_mov_b32 v{CA+i}, 0")
    A(f"s_waitcnt vmcnt(4)")
    ST("cv_ssm")
    for i in range(4):
        A(f"ds_write_b128 v101, {vr(SK+4*i,4)} offset:{OB+32+1024*i}")
    for i in range(4):
        t = CT + 8*(i % 2)
        if i < 3: A(f"v_readfirstlane_b32 s34, v{SK+4*(i+1)}\ns_nop 1\nv_mov_b32 v{t+4}, s34")
        else: A(f"v_mov_b32 v{t+4}, 0")
        A(f"s_nop 1\nv_mov_b32_dpp v{t+4}, v{SK+4*i} wave_shl:1 row_mask:0xf bank_mask:0xf")
        for j in range(4):
            hi = f"v{SK+4*i+j+1}" if j < 3 else f"v{t+4}"
            A(f"v_alignbyte_b32 v{t+j}, {hi}, v{SK+4*i+j}, 2")
        A(f"ds_write_b128 v101, {vr(t,4)} offset:{32+1024*i}")
    A(f"v_lshlrev_b32 v{CT+7}, 16, v{SK}\ns_mov_b64 exec, 1\nds_write_b32 v101, v{CT+7} offset:28\ns_mov_b64 exec, -1")
    if mbox:
        A(f"s_cmp_lg_u32 s26, 0\ns_cbranch_scc1 {name}_zok\nv_lshlrev_b32 v26, 7, v31\ns_mov_b32 s95, 0x200000\ns_mov_b64 exec, 3")
        A(f"{name}_zl:\nbuffer_load_dword v27, v26, s[72:75], 0 offen sc1\ns_waitcnt vmcnt(0)\nv_cmp_eq_u32 vcc, 128, v27")
        A(f"s_cmp_eq_u32 vcc_lo, 3\ns_cbranch_scc1 {name}_zd\ns_sleep {sleep}\ns_sub_u32 s95, s95, 1\ns_cmp_lg_u32 s95, 0\ns_cbranch_scc1 {name}_zl\n{name}_zd:\ns_mov_b64 exec, -1\n{name}_zok:")
        msignal(A, "v_lshlrev_b32 v26, 10, v31", "s98", 16)
        ST("cv_usig")
        mwait(A, 0, 16)
    else:
        A(f"s_cmp_lg_u32 s26, 0\ns_cbranch_scc1 {name}_zok\nv_mov_b32 v26, 0\ns_mov_b32 s95, 0x200000")
        A(f"{name}_zl:\nbuffer_load_dword v27, v26, s[72:75], 0 offen sc1\ns_waitcnt vmcnt(0)\nv_readfirstlane_b32 s96, v27")
        A(f"s_cmp_ge_u32 s96, {NOBJ//8}\ns_cbranch_scc1 {name}_zok\ns_sleep {sleep}\ns_sub_u32 s95, s95, 1\ns_cmp_lg_u32 s95, 0\ns_cbranch_scc1 {name}_zl\n{name}_zok:")
        signal(A, "s98", 16)
        ST("cv_usig")
        wait(A, "s99")
    ST("cv_ugo")
    A("s_mov_b32 m0, s71\ns_nop 0")
    for i in range(4): A(f"buffer_load_dwordx4 v3, s[40:43], 0 offen offset:{1024*i} lds")
    A(f"s_waitcnt vmcnt(0) lgkmcnt(0)")
    def creads(r):
        pb = (r % 2)*64
        L = []
        for k in range(8):
            m = 8*k + r; o = (m % 16)*16
            L.append(f"ds_read_b128 {ar(pb + 32 + 4*k, 4)}, v100 offset:{3584 - 64*(8*k - r)}")
            L.append(f"ds_read2_b32 {ar(pb + 4*k, 2)}, v{102 + m//16} offset0:{o} offset1:{o+1}")
            L.append(f"ds_read2_b32 {ar(pb + 4*k + 2, 2)}, v{102 + m//16} offset0:{o+2} offset1:{o+3}")
        return L
    for ins in creads(0): A(ins)
    cnt = 0
    for r in range(8):
        A("s_waitcnt lgkmcnt(0)")
        pb = (r % 2)*64
        nxt = creads(r+1) if r < 7 else []
        seq = [(nb, ar(pb + 4*(nb-q1), 4), q1) for q1 in range(8) for nb in range(q1, 8)]
        if r == 0: seq += [(q1, vr(AD, 4), q1) for q1 in range(8)]
        for nb, a, q1 in seq:
            A(f"v_mfma_f32_16x16x32_bf16 {vr(CA+4*nb,4)}, {a}, {ar(pb + 32 + 4*q1, 4)}, {vr(CA+4*nb,4)}")
            if nxt: A(nxt.pop(0))
            cnt += 1
            if late and cnt % lstep == 0: late.pop(0)()
    assert not late
    ST("cv_mfma")
    A(f"s_mul_i32 s34, s2, {YGS}\ns_add_u32 s34, s34, {WS_Y}\ns_add_u32 s40, s24, s34\ns_addc_u32 s41, s25, 0\ns_mov_b32 s42, 16384\ns_mov_b32 s43, 0x20000")
    A("s_mov_b32 s34, 0x05040100\ns_mov_b32 s35, 0x07060302\ns_nop 4")
    for nb in range(8):
        A(f"v_cvt_pk_bf16_f32 v{CT+2*nb}, v{CA+4*nb}, v{CA+4*nb+1}\nv_cvt_pk_bf16_f32 v{CT+2*nb+1}, v{CA+4*nb+2}, v{CA+4*nb+3}")
        A(f"ds_write_b64 v107, {vr(CT+2*nb,2)} offset:{512*nb}")
    A("s_waitcnt lgkmcnt(0)\ns_barrier")
    for c in range(4):
        for ch in range(4): A(f"ds_read_b32 v{SK+4*c+ch}, v108 offset:{ch*4096 + 1024*c}")
    for c in range(4):
        A(f"s_waitcnt lgkmcnt({12-4*c})")
        o = CA + 4*c; b = SK + 4*c
        A(f"v_perm_b32 v{o}, v{b+1}, v{b}, s34\nv_perm_b32 v{o+1}, v{b+3}, v{b+2}, s34")
        A(f"v_perm_b32 v{o+2}, v{b+1}, v{b}, s35\nv_perm_b32 v{o+3}, v{b+3}, v{b+2}, s35")
        A(f"s_mov_b32 s36, {4096*c}\nbuffer_store_dwordx4 {vr(o,4)}, v109, s[40:43], s36 offen {sf}")
    ST("cv_stored")
    A(f"s_waitcnt vmcnt(4)")
    for i in range(16): A(f"v_mov_b32 v{RX+i}, v{QR+i}")
    A(f"s_getpc_b64 s[50:51]\n{name}_pc:\ns_add_u32 s50, s50, {name}_stats-{name}_pc\ns_addc_u32 s51, s51, 0")
    ln_consts()
    A("s_swappc_b64 s[54:55], s[50:51]")
    A(f"v_lshlrev_b32 v19, 2, v18\nv_add_u32 v19, v19, v17\nv_mul_u32_u24 v19, {2*YGS}, v19\nv_lshl_add_u32 v19, v16, 3, v19\nv_add_u32 v20, {YGS}, v19")
    A(f"s_mul_i32 s34, s26, {64*YGS}\ns_lshl_b32 s35, s3, 6\ns_add_u32 s34, s34, s35\ns_add_u32 s35, s34, {16*YGS}\ns_add_u32 s36, s34, {32*YGS}\ns_add_u32 s37, s34, {48*YGS}")
    srd(A, 40, 24, 256*YGS, WS_Y)
    A("s_waitcnt vmcnt(0)\ns_barrier")
    ST("y_drained")
    A(f"s_cmp_lg_u32 s26, 0\ns_cbranch_scc1 {name}_yw")
    A(f"s_and_b32 s98, s2, {yng-1}\ns_lshl_b32 s98, s98, 7\ns_add_u32 s98, s98, {F_Y1 << 10}\ns_mov_b32 s99, {(F_Y1+4) << 10}")
    A("v_mov_b32 v26, 0\nv_mov_b32 v27, 1\ns_mov_b64 exec, 1")
    A("buffer_atomic_add v27, v26, s[88:91], s98 offen sc0 sc1")
    A("s_waitcnt vmcnt(0)\nv_readfirstlane_b32 s96, v27")
    A(f"s_cmp_lg_u32 s96, {256//yng - 1}\ns_cbranch_scc1 {name}_yp")
    if mbox and ytop:
        A("v_mov_b32 v27, 1\nbuffer_atomic_add v27, v26, s[88:91], s99 offen sc0 sc1")
        A("s_waitcnt vmcnt(0)\nv_readfirstlane_b32 s96, v27")
        A(f"s_cmp_lg_u32 s96, {yng - 1}\ns_cbranch_scc1 {name}_yp")
        A(f"s_mov_b64 exec, -1\nv_mov_b32 v27, 1\nv_lshlrev_b32 v26, 10, v31\ns_mov_b32 s99, {MB + 128}")
        for k in range(4):
            A("buffer_store_dword v27, v26, s[88:91], s99 offen sc1" + ("\ns_add_u32 s99, s99, 65536" if k < 3 else ""))
        A(f"{name}_yp:")
        A(f"s_add_u32 s98, s97, 128\ns_mov_b64 exec, -1\nv_mov_b32 v26, 0\ns_mov_b32 s95, 0x200000")
        A(f"{name}_yl:\nbuffer_load_dword v27, v26, s[88:91], s98 offen sc1\ns_waitcnt vmcnt(0)\nv_readfirstlane_b32 s96, v27\ns_cmp_eq_u32 s96, 1")
        A(f"s_cbranch_scc1 {name}_yd\ns_sleep {sleep}\ns_sub_u32 s95, s95, 1\ns_cmp_lg_u32 s95, 0\ns_cbranch_scc1 {name}_yl")
    elif mbox:
        assert yng <= 32
        A(f"s_mov_b64 exec, -1\nv_mov_b32 v27, 1\nv_lshlrev_b32 v26, 10, v31\ns_and_b32 s99, s2, {yng-1}\ns_lshl_b32 s99, s99, 2\ns_add_u32 s99, s99, {MB + 128}")
        for k in range(4):
            A("buffer_store_dword v27, v26, s[88:91], s99 offen sc1" + ("\ns_add_u32 s99, s99, 65536" if k < 3 else ""))
        A(f"{name}_yp:")
        A(f"s_add_u32 s98, s97, 128\ns_mov_b64 exec, -1\nv_lshlrev_b32 v26, 2, v31\ns_mov_b32 s95, 0x200000\ns_mov_b64 exec, {hex((1<<yng)-1)}")
        A(f"{name}_yl:\nbuffer_load_dword v27, v26, s[88:91], s98 offen sc1\ns_waitcnt vmcnt(0)\nv_cmp_eq_u32 vcc, 1, v27\ns_cmp_eq_u32 vcc_lo, {hex((1<<yng)-1)}")
        A(f"s_cbranch_scc1 {name}_yd\ns_sleep {sleep}\ns_sub_u32 s95, s95, 1\ns_cmp_lg_u32 s95, 0\ns_cbranch_scc1 {name}_yl")
    else:
        A("v_mov_b32 v27, 1\nbuffer_atomic_add v27, v26, s[88:91], s99 offen sc0 sc1")
        A("s_waitcnt vmcnt(0)\nv_readfirstlane_b32 s96, v27")
        A(f"s_cmp_lg_u32 s96, {yng - 1}\ns_cbranch_scc1 {name}_yp")
        A(f"s_mov_b64 exec, 0xffff\nv_mov_b32 v27, 1\nv_lshlrev_b32 v26, 10, v31\ns_mov_b32 s99, {F_Y2 << 10}\nbuffer_store_dword v27, v26, s[88:91], s99 offen sc1")
        A(f"{name}_yp:")
        A(f"s_mov_b64 exec, -1\ns_lshr_b32 s98, s2, 4\ns_add_u32 s98, s98, {F_Y2}\ns_lshl_b32 s98, s98, 10\nv_mov_b32 v26, 0\ns_mov_b32 s95, 0x200000")
        A(f"{name}_yl:\nbuffer_load_dword v27, v26, s[88:91], s98 offen sc1\ns_waitcnt vmcnt(0)\nv_readfirstlane_b32 s96, v27\ns_cmp_eq_u32 s96, 1")
        A(f"s_cbranch_scc1 {name}_yd\ns_sleep {sleep}\ns_sub_u32 s95, s95, 1\ns_cmp_lg_u32 s95, 0\ns_cbranch_scc1 {name}_yl")
    A(f"{name}_yd:\ns_mov_b64 exec, -1\n{name}_yw:")
    for i in range(16):
        A(f"v_lshlrev_b32 v{X+2*i}, 16, v{RX+i}\nv_and_b32 v{X+2*i+1}, 0xffff0000, v{RX+i}")
    A("s_barrier")
    ST("y_go")
    for i in range(4):
        A(f"buffer_load_dwordx2 {vr(RY+4*i,2)}, v19, s[40:43], s{34+i} offen")
        A(f"buffer_load_dwordx2 {vr(RY+4*i+2,2)}, v20, s[40:43], s{34+i} offen")
    A("s_waitcnt vmcnt(0)")
    A(f"s_branch {name}_lngo2")
    A(f"{name}_layer:")
    tg_map(A)
    A(f"s_lshr_b32 s34, s3, 4\ns_add_u32 s34, s34, {F_D}\ns_lshl_b32 s34, s34, 10")
    srd(A, 8, 24, XFB, O_T0)
    srd(A, 40, 24, XFB, O_T1)
    if w1pos == 0:
        g1_scalars(); wpre()
        A(f"s_lshr_b32 s34, s3, 4\ns_add_u32 s34, s34, {F_D}\ns_lshl_b32 s34, s34, 10")
    ST("lnb_prewait")
    if mbox: mwait(A, 4, 16)
    else: wait(A, "s34")
    ST("lnb_postwait")
    tloads()
    if w1pos > 0: g1_scalars()
    if w1pos == 1: wpre()
    ln_consts()
    unstash_x()
    for i in range(16): A(f"v_accvgpr_read_b32 v{RY+i}, a{AY+i}")
    for i in range(4):
        A(f"s_waitcnt vmcnt({6-2*i + (7*NWPRE if w1pos == 1 else 0)})")
        tsum(i)
    if w1pos == 2: wpre()
    A(f"{name}_lngo:")
    ST("ln_xready")
    A("s_swappc_b64 s[54:55], s[50:51]")
    A(f"{name}_lngo2:")
    ST("ln_go2")
    for i in range(16):
        A(f"v_lshlrev_b32 v{RB}, 16, v{RY+i}\nv_and_b32 v{RB+1}, 0xffff0000, v{RY+i}")
        A(f"v_pk_fma_f32 {vr(Z,2)}, {vr(X+2*i,2)}, {vr(SV+2,2)}, {vr(SV,2)} op_sel_hi:[1,0,0]")
        A(f"v_pk_fma_f32 {vr(X+2*i,2)}, {vr(Z,2)}, {vr(RB,2)}, {vr(X+2*i,2)}")
        A(f"v_cvt_pk_bf16_f32 v{RX+i}, v{X+2*i}, v{X+2*i+1}")
    A("v_add_u32 v14, 256, v14\nv_add_u32 v15, 256, v15")
    A("s_swappc_b64 s[54:55], s[50:51]")
    for i in range(16):
        A(f"v_pk_fma_f32 {vr(Z,2)}, {vr(X+2*i,2)}, {vr(SV+2,2)}, {vr(SV,2)} op_sel_hi:[1,0,0]")
        A(f"v_cvt_pk_bf16_f32 v{RB+i}, v{Z}, v{Z+1}")
        if i % 4 == 3: A(f"buffer_store_dwordx4 {vr(RB+i-3,4)}, v12, s[44:47], s{29+i//4} offen {sf}")
    ST("ln_stored")
    for i in range(16): A(f"v_accvgpr_write_b32 a{AX+i}, v{RX+i}\nv_accvgpr_write_b32 a{AY+i}, v{RY+i}")
    A(f"s_lshr_b32 s49, s3, 5\ns_add_u32 s49, s49, {F_A}\ns_lshl_b32 s49, s49, 10\ns_add_u32 s49, s49, s85")
    A(f"s_lshl_b32 s34, s27, 2\ns_add_u32 s34, s34, s26\ns_mul_i32 s34, s34, {32*KP}")
    A(f"s_add_u32 s8, s86, s34\ns_addc_u32 s9, s87, 0\ns_mov_b32 s10, {32*KP}\ns_mov_b32 s11, 0x20000")
    srd(A, 16, 86, 2048*3584*2, O_H)
    A(f"s_mov_b32 s36, {f2u(c1)}\ns_mov_b32 s37, {f2u(c1)}")
    A(f"s_lshl_b32 s29, s27, 1\ns_lshr_b32 s30, s26, 1\ns_add_u32 s29, s29, s30\ns_mul_i32 s29, s29, {112*8192}")
    A("s_and_b32 s30, s26, 1\ns_lshl_b32 s30, s30, 12\ns_add_u32 s29, s29, s30")
    A("s_mul_i32 s30, s28, 7\ns_and_b32 s31, s28, 1\ns_add_u32 s30, s30, s31\ns_lshl_b32 s30, s30, 12\ns_add_u32 s38, s29, s30")
    A("s_lshr_b32 s30, s28, 1\ns_mul_i32 s30, s30, 7\ns_add_u32 s30, s30, 3\ns_lshl_b32 s30, s30, 13\ns_lshl_b32 s31, s31, 9\ns_add_u32 s39, s29, s30\ns_add_u32 s39, s39, s31")
    A("s_add_u32 s61, s38, 8192\ns_add_u32 s62, s38, 16384")
    A(f"s_lshr_b32 s30, s2, 4\ns_mul_i32 s30, s30, {224*2048}\ns_and_b32 s31, s2, 15\ns_lshl_b32 s31, s31, 7\ns_add_u32 s30, s30, s31\ns_lshl_b32 s31, s26, 14\ns_add_u32 s30, s30, s31")
    A(f"s_add_u32 s56, s52, s30\ns_addc_u32 s57, s53, 0\ns_mul_i32 s58, s60, {6*65536 + 8*2048 - 15*128}\ns_mov_b32 s59, 0x20000")
    A(f"s_mov_b32 s70, 0\ns_lshl_b32 s71, s26, 10\ns_add_u32 s71, s71, {PK}\ns_add_u32 s72, s71, {7*4096}")
    srd(A, 40, 24, 3584*2048, WS_WDP)
    A("s_and_b32 s30, s2, 15\ns_mul_i32 s30, s30, 112\ns_lshr_b32 s31, s2, 4\ns_mul_i32 s31, s31, 7\ns_add_u32 s30, s30, s31\ns_lshl_b32 s30, s30, 2\ns_add_u32 s30, s30, s26\ns_lshl_b32 s44, s30, 10")
    A(f"s_bfe_u32 s45, s2, 0x30001\ns_lshl_b32 s45, s45, 1\ns_lshr_b32 s30, s2, 7\ns_add_u32 s45, s45, s30\ns_add_u32 s45, s45, {F_C}\ns_lshl_b32 s45, s45, 10")
    A(f"s_lshl_b32 s46, s27, 1\ns_lshr_b32 s30, s28, 4\ns_add_u32 s46, s46, s30\ns_add_u32 s46, s46, {F_B}\ns_lshl_b32 s46, s46, 10\ns_add_u32 s46, s46, s85")
    A(f"s_add_u32 s47, s27, {F_A}\ns_lshl_b32 s47, s47, 10\ns_add_u32 s47, s47, s85")
    if mbox:
        A(f"s_lshr_b32 s30, s3, 5\ns_lshr_b32 s31, s30, 2\ns_and_b32 s30, s30, 3\ns_lshl_b32 s30, s30, 3\ns_add_u32 s30, s30, s31\ns_lshl_b32 s49, s30, 10")
        A(f"s_and_b32 s30, s3, 31\ns_lshl_b32 s30, s30, 2\ns_add_u32 s49, s49, s30\ns_add_u32 s49, s49, {MB + 2*128}\ns_add_u32 s49, s49, s85")
        A("s_lshr_b32 s30, s28, 4\ns_and_b32 s31, s27, 6\ns_add_u32 s30, s30, s31\ns_and_b32 s31, s27, 1\ns_lshl_b32 s31, s31, 4\ns_add_u32 s30, s30, s31\ns_lshl_b32 s46, s30, 10")
        A(f"s_and_b32 s30, s28, 15\ns_lshl_b32 s30, s30, 2\ns_add_u32 s46, s46, s30\ns_add_u32 s46, s46, {MB + 3*128}\ns_add_u32 s46, s46, s85")
        A("s_lshr_b32 s30, s2, 7\ns_bfe_u32 s31, s2, 0x30001\ns_lshl_b32 s31, s31, 5\ns_add_u32 s30, s30, s31\ns_lshl_b32 s45, s30, 10")
        A(f"s_bfe_u32 s30, s2, 0x30004\ns_lshl_b32 s30, s30, 1\ns_and_b32 s31, s2, 1\ns_add_u32 s30, s30, s31\ns_lshl_b32 s30, s30, 2\ns_add_u32 s45, s45, s30\ns_add_u32 s45, s45, {MB + 3*128 + 64}")
    if wpf:
        A(f"s_and_b32 s33, s27, 3\ns_lshl_b32 s33, s33, 6\ns_lshr_b32 s32, s26, 1\ns_lshl_b32 s32, s32, 3\ns_add_u32 s33, s33, s32\ns_add_u32 s33, s33, 256\ns_mul_i32 s73, s33, 7168")
        A(f"s_mul_i32 s32, s28, 224\ns_and_b32 s32, s32, 0xffffff80\ns_sub_u32 s33, {1024*7168}, s32\ns_and_b32 s30, s26, 1\ns_cmp_eq_u32 s30, 0")
        A("s_cselect_b32 s28, s4, s6\ns_cselect_b32 s29, s5, s7\ns_add_u32 s28, s28, s32\ns_addc_u32 s29, s29, 0\ns_mul_i32 s30, s33, s60\ns_mov_b32 s31, 0x20000")
        A("v_accvgpr_read_b32 v21, a254")
    if mbox: msignal(A, "v_lshrrev_b32 v26, 3, v31\nv_lshlrev_b32 v26, 11, v26\nv_and_b32 v27, 7, v31\nv_lshl_add_u32 v26, v27, 15, v26", "s49", 32)
    else: signal(A, "s49", 32)
    ST("ln_signaled")
    def trread(q, half, s, st, n):
        slot = s % 4
        base = "v1" if slot < 2 else "v2"
        off = (slot % 2)*SLOT + st*14336 + (n & 1)*7168 + (n >> 1)*32 + half*3584
        A(f"ds_read_b64_tr_b16 {ar(WR + (q % R)*4 + half*2, 2)}, {base} offset:{off}")
    frags = [(s, st, n) for s in range(13) for st in range(2) for n in range(14)]
    NQ0 = len(frags)
    def pf(j, sss): return [(13 + ss//2, ss % 2, 2*j + m) for ss in sss for m in range(2)]
    frags += pf(0, [0]) + pf(1, [0]) + pf(0, [1,2,3]) + pf(1, [1,2,3]) + pf(2, [0,1,2,3]) + pf(0, [4,5]) + pf(1, [4,5]) + pf(2, [4,5])
    for j in range(3, 7): frags += pf(j, range(6))
    assert NWPRE in (2, 3)
    for q in range(D):
        for half in range(2): trread(q, half, *frags[q])
    if mbox: mwait(A, 2, 32, lay=True)
    else: wait(A, "s47")
    ST("g1_go")
    for t in range(2):
        for x in range(4): both(xload, t, x)
    def pack_dma(emit):
        if emit:
            A("s_min_u32 m0, s71, s72\ns_add_u32 s71, s71, 4096")
            A("buffer_load_dwordx4 v11, s[56:59], s70 offen lds\ns_add_u32 s70, s70, 65536")
        else:
            vm.issue("P"); vt.issue("P")
    def wtouch(s, emit):
        if emit:
            A("s_mov_b32 exec_lo, 0xffffff\ns_mov_b32 exec_hi, 0\nbuffer_load_dword a253, v21, s[28:31], s73 offen\ns_mov_b64 exec, -1")
            A(f"s_add_u32 s73, s73, {(16 if s % 4 else 16 + 192)*7168}")
        else:
            vm.issue("T"); vt.issue("T")
    def stage(s, emit, key, extra=None, bp=barpos):
        for st in range(2):
            t = s*2 + st
            for n in range(14):
                q = t*14 + n
                w = []
                if n == 0:
                    site = ("x", key, st)
                    if not emit: vm.wait(site, [("X", t)])
                    else: w.append(vm.need[site])
                isbar = (st*14 + n == bp)
                if isbar:
                    site = ("b", key)
                    if not emit: vm.wait(site, [("W", s+1)])
                    else: w.append(vm.need[site])
                if emit:
                    ww = [f"vmcnt({min(w)})"] if w and min(w) < 63 else []
                    ww.append(f"lgkmcnt({2*(D-1)})")
                    A("s_waitcnt " + " ".join(ww))
                    if isbar: A("s_barrier")
                for x in range(4):
                    if emit:
                        xx = 3 - x if (snake and n % 2) else x
                        c = "0" if t == 0 else vr(acc(n,xx),4)
                        A(f"v_mfma_f32_16x16x32_bf16 {vr(acc(n,xx),4)}, {ar(WR+(q%R)*4,4)}, {ar(XR+(t%NX)*16+xx*4,4)}, {c}")
                        if x < 2: trread(q + D, x, *frags[q + D])
                    if extra is not None:
                        if x >= 2:
                            for th in extra.get((st*14 + n, x), []): th(emit)
                    elif x == 2:
                        pos = st*14 + n
                        if pos in xpos:
                            k = xpos.index(pos); xload(2*s + LAX + k//4, k % 4, emit)
                        if pos in wpos: dma(s+2, wpos.index(pos), emit)
                        if pos == ppos and not packtail: pack_dma(emit)
                        if wpf and pos == wpf: wtouch(s, emit)
    def xl(t): return [(xload, t, x) for x in range(4)]
    seq = xl(2)
    if wpf: seq += [(lambda a, b, emit: wtouch(a, emit), k + 1, 0) for k in range(4)]
    if NWPRE == 2: seq += [(dma, 2, i) for i in range(7)]
    for t in range(3, 2 + LAX): seq += xl(t)
    slots = [(n, 2) for n in range(26)]
    extra = {}
    for k, (fn, a, b) in enumerate(seq):
        sl = slots[min(len(slots)-1, k * len(slots) // max(len(seq), 1))]
        extra.setdefault(sl, []).append(lambda emit, fn=fn, a=a, b=b: fn(a, b, emit))
    bp0 = -1 if NWPRE >= 2 else 28 - D - 1
    stage(0, False, "s0", extra, bp0)
    for it in range(3):
        for sp in range(4): stage(1 + it*4 + sp, False, ("L", sp))
    stage(0, True, "s0", extra, bp0)
    ST("g1_s0")
    A("s_mov_b32 s35, 3")
    A(f".p2align 6\n{name}_g1loop:")
    for sp in range(4): stage(9 + sp, True, ("L", sp))
    A(f"s_sub_u32 s35, s35, 1\ns_cmp_lg_u32 s35, 0\ns_cbranch_scc1 {name}_g1loop")
    ST("g1_loopend")
    def pack_block(nst):
        A(f"s_cmp_eq_u32 s60, 0\ns_cbranch_scc1 {name}_nopk2")
        if nst is not None: A(f"s_waitcnt vmcnt({nst})\ns_barrier")
        for u in range(7):
            if u == 3: A(f"ds_read_b64_tr_b16 {ar(PR+4*u,2)}, v24\nds_read_b64_tr_b16 {ar(PR+4*u+2,2)}, v25")
            else: A(f"ds_read_b64_tr_b16 {ar(PR+4*u,2)}, v23 offset:{u*4096}\nds_read_b64_tr_b16 {ar(PR+4*u+2,2)}, v23 offset:{u*4096+2048}")
        for u in range(7):
            A(f"s_waitcnt lgkmcnt({12-2*u})")
            A(f"buffer_store_dwordx4 {ar(PR+4*u,4)}, v3, s[40:43], s44 offen {sf}")
            if u < 6: A("s_add_u32 s44, s44, 4096")
        A(f"{name}_nopk2:")
    if not packtail: pack_block(None)
    npk = 0; nst = 0
    xt = list(range(26 + LAX, 32))
    tl_loads = []
    while xt and xt[0] < 30: tl_loads += xl(xt.pop(0))
    tl_loads += [(dma, 15, i) for i in range(7)]
    while xt: tl_loads += xl(xt.pop(0))
    def finish(j, x):
        g = acc(2*j, x)
        if j % 2 == 1:
            return [f"buffer_store_dwordx4 {vr(acc(2*(j-1),x),4)}, v3, s[16:19], {('s38','s61','s62')[j//2]} offen offset:{x*1024} {sf}"]
        if j == 6:
            return [f"v_mov_b32 v{g+2}, v{g}\nv_mov_b32 v{g+3}, v{g+1}\ns_nop 1",
                    f"v_permlane16_swap_b32 v{g}, v{g+2}\nv_permlane16_swap_b32 v{g+1}, v{g+3}"]
        return []
    def dst(j, x): return acc(2*j, x) if j % 2 == 0 else acc(2*(j-1), x) + 2
    def epi_pk(j, x, T):
        g = acc(2*j, x); u = acc(2*j+1, x)
        L = []
        L.append(f"v_pk_mul_f32 {vr(T,2)}, {vr(g,2)}, {vr(g,2)}")
        L.append(f"v_pk_mul_f32 {vr(T+2,2)}, {vr(g+2,2)}, {vr(g+2,2)}")
        L.append(f"v_pk_fma_f32 {vr(T,2)}, {vr(T,2)}, s[36:37], v[28:29]")
        L.append(f"v_pk_fma_f32 {vr(T+2,2)}, {vr(T+2,2)}, s[36:37], v[28:29]")
        L.append(f"v_pk_mul_f32 {vr(T,2)}, {vr(T,2)}, {vr(g,2)}")
        L.append(f"v_pk_mul_f32 {vr(T+2,2)}, {vr(T+2,2)}, {vr(g+2,2)}")
        for e in range(4): L.append(f"v_exp_f32 v{T+e}, v{T+e}")
        L.append(f"v_pk_mul_f32 {vr(u,2)}, {vr(g,2)}, {vr(u,2)}")
        L.append(f"v_pk_add_f32 {vr(T,2)}, {vr(T,2)}, 1.0 op_sel_hi:[1,0]")
        L.append(f"v_pk_add_f32 {vr(T+2,2)}, {vr(T+2,2)}, 1.0 op_sel_hi:[1,0]")
        for e in range(4): L.append(f"v_rcp_f32 v{T+e}, v{T+e}")
        L.append(f"v_pk_mul_f32 {vr(u+2,2)}, {vr(g+2,2)}, {vr(u+2,2)}")
        L.append(f"v_pk_mul_f32 {vr(u,2)}, {vr(u,2)}, {vr(T,2)}")
        L.append(f"v_pk_mul_f32 {vr(u+2,2)}, {vr(u+2,2)}, {vr(T+2,2)}")
        d = dst(j, x)
        L.append(f"v_cvt_pk_bf16_f32 v{d}, v{u}, v{u+1}")
        L.append(f"v_cvt_pk_bf16_f32 v{d+1}, v{u+2}, v{u+3}")
        return L + finish(j, x)
    class Grp:
        def __init__(s, j, x, T):
            g = acc(2*j, x); u = acc(2*j+1, x); d = dst(j, x)
            s.j, s.x, s.T = j, x, T
            s.ops = []; fin = []
            for e in range(4):
                t = T + e; b = len(s.ops)
                s.ops += [["V", f"v_mul_f32 v{t}, v{g+e}, v{g+e}", []],
                          ["V", f"v_fma_f32 v{t}, v{t}, s36, v28", [b]],
                          ["V", f"v_mul_f32 v{t}, v{t}, v{g+e}", [b+1]],
                          ["T", f"v_exp_f32 v{t}, v{t}", [b+2]],
                          ["V", f"v_add_f32 v{t}, 1.0, v{t}", [b+3]],
                          ["T", f"v_rcp_f32 v{t}, v{t}", [b+4]],
                          ["V", f"v_mul_f32 v{u+e}, v{g+e}, v{u+e}", []],
                          ["V", f"v_mul_f32 v{u+e}, v{u+e}, v{t}", [b+5, b+6]]]
                fin.append(b+7)
            gdeps = [i for e in range(4) for i in (8*e+2, 8*e+6)]
            s.ops.append(["V", f"v_cvt_pk_bf16_f32 v{d}, v{u}, v{u+1}", fin[:2] + gdeps])
            s.ops.append(["V", f"v_cvt_pk_bf16_f32 v{d+1}, v{u+2}, v{u+3}", fin[2:] + gdeps])
            n = len(s.ops)
            for f in finish(j, x): s.ops.append(["F", f, [n-2, n-1]])
            s.done = [None]*len(s.ops)
        def ready(s, types, now):
            for i, (ty, tx, dp) in enumerate(s.ops):
                if s.done[i] is None and ty in types and all(s.done[k] is not None and s.done[k] + (2 if s.ops[k][0] == "T" else 1) <= now for k in dp):
                    return i
            return None
        def finished(s): return all(d is not None for d in s.done)
    tail = frags[NQ0:]
    last_pos = {}
    for p, (s_, st_, n_) in enumerate(tail): last_pos[n_ >> 1] = p
    done_at = {p: j for j, p in last_pos.items()}
    first_use = {}
    for p, (s_, st_, n_) in enumerate(tail): first_use.setdefault((s_-13)*2 + st_, p)
    bar14 = first_use[2] - D; bar15 = first_use[4] - D
    pending = []; active = []; temps = [12, 16]
    mi = 0; now = 0
    for p, (s_, st_, n_) in enumerate(tail):
        q = NQ0 + p
        ss = (s_-13)*2 + st_
        w = []; cands = []
        if first_use[ss] == p: vt.wait(("t", ss), [("X", 26 + ss)]); cands.append(vt.need[("t", ss)])
        if p == bar14: vt.wait("tb14", [("W", 14)]); cands.append(vt.need["tb14"])
        if p == bar15: vt.wait("tb15", [("W", 15)]); cands.append(vt.need["tb15"])
        if cands: w.append(f"vmcnt({min(cands)})")
        if p % 2 == 0:
            rem = len(tail) - p - 2
            w.append(f"lgkmcnt({min(2*(D-2), 2*rem)})")
        if w: A("s_waitcnt " + " ".join(w))
        if p == bar14 or p == bar15: A("s_barrier")
        if p == bar15 and not packtail:
            A(f"s_cmp_eq_u32 s60, 0\ns_cbranch_scc1 {name}_noc")
            if mbox: msignal(A, "v_lshrrev_b32 v26, 2, v31\nv_lshlrev_b32 v26, 11, v26\nv_and_b32 v27, 3, v31\nv_lshl_add_u32 v26, v27, 13, v26", "s45", 16, sync=False)
            else: post(A, ["s45"])
            A(f"{name}_noc:")
        for x in range(4):
            xs_ = 3 - x if (snake and n_ % 2) else x
            A(f"v_mfma_f32_16x16x32_bf16 {vr(acc(n_,xs_),4)}, {ar(WR+(q%R)*4,4)}, {ar(XR+((26+ss)%NX)*16+xs_*4,4)}, {vr(acc(n_,xs_),4)}")
            mi += 1; now += 1
            if x < 2 and p + D < len(tail): trread(q + D, x, *tail[p + D]); now += 1
            while pending and pending[0][0] <= mi and temps and len(active) < 2:
                _, j, xx = pending.pop(0); active.append(Grp(j, xx, temps.pop(0)))
            if x >= 2 and tl_loads and (x == 2 or p % 2 == 0):
                fn, a_, b_ = tl_loads.pop(0); both(fn, a_, b_)
            if packtail and x == 3 and p > first_use[5] and npk < 7 and p % 2 == 1:
                pack_dma(True); npk += 1; nst = 0
            pat = slots_pat[x]
            for ch in {"V": ["V"], "T": ["TV"], "A": ["TV"], "": []}[pat]:
                for ty in ch:
                    hit = None
                    for g in active:
                        i = g.ready(ty + ("F" if ty == "V" else ""), now)
                        if i is not None: hit = (g, i); break
                    if hit:
                        g, i = hit; A(g.ops[i][1]); g.done[i] = now; now += 1
                        if "buffer_store" in g.ops[i][1]: vt.issue("S"); nst += 1
                        break
            for g in list(active):
                if g.finished(): active.remove(g); temps.append(g.T)
        if p in done_at:
            j = done_at[p]
            for x in range(4): pending.append((mi + 5 + x, j, 3 - x if snake else x))
    A("s_nop 7")
    ST("g1_mfmaend")
    now += 8
    while active:
        prog = False
        for g in list(active):
            i = g.ready("VTF", now)
            if i is not None:
                A(g.ops[i][1]); g.done[i] = now; now += 1; prog = True
                if "buffer_store" in g.ops[i][1]: nst += 1
            if g.finished(): active.remove(g)
        if not prog: A("s_nop 0"); now += 1
    for k, (_, j, xx) in enumerate(pending):
        if packtail and k == pkafter: pack_block(nst)
        for ins in epi_pk(j, xx, 12 + 4*(k % 2)):
            A(ins)
            if "buffer_store" in ins: nst += 1
    A("s_mov_b32 exec_lo, 0xffff\ns_mov_b32 exec_hi, 0xffff")
    for x in range(4):
        A(f"buffer_store_dwordx4 {vr(acc(12,x),4)}, v30, s[16:19], s39 offen offset:{x*1024} {sf}")
    A("s_mov_b64 exec, -1")
    ST("g1_stored")
    ACC2 = 64
    def acc2(x, j): return ACC2 + (x*2 + j)*4
    WRG = 0; NW = 8; HR = 64; R2 = 8; SLOT2 = 32768; D2 = g2D
    A("s_mov_b32 s101, s45")
    A("s_and_b32 s33, s2, 1")
    A("s_bfe_u32 s27, s2, 0x20001\ns_lshl_b32 s27, s27, 2\ns_bfe_u32 s29, s2, 0x20003\ns_add_u32 s27, s27, s29\ns_lshr_b32 s28, s2, 5")
    A("v_lshlrev_b32 v128, 4, v31\nv_add_u32 v129, 4096, v128")
    A(f"v_mov_b32 v130, v128\nv_add_u32 v131, {2*SLOT2}, v128")
    A(f"s_mul_i32 s30, s33, 56\ns_mul_i32 s29, s27, 112\ns_add_u32 s29, s29, s30\ns_add_u32 s29, s29, s26\ns_lshl_b32 s29, s29, 13\ns_add_u32 s29, s29, {O_H}")
    A(f"s_lshl_b32 s31, s28, 1\ns_lshr_b32 s32, s26, 1\ns_add_u32 s31, s31, s32\ns_mul_i32 s31, s31, 112\ns_add_u32 s31, s31, s30\ns_lshl_b32 s31, s31, 12")
    A(f"s_and_b32 s32, s26, 1\ns_lshl_b32 s32, s32, 11\ns_add_u32 s31, s31, s32\ns_add_u32 s31, s31, {WS_WDP}")
    A("s_lshl_b32 s22, s26, 13")
    A(f"s_sub_u32 s34, {56*8192}, s22\ns_sub_u32 s32, {56*4096}, s32")
    A("s_mov_b32 s20, 0\ns_mov_b32 s21, 0")
    A(f"s_add_u32 s8, s86, s29\ns_addc_u32 s9, s87, 0\ns_mov_b32 s10, s34\ns_mov_b32 s11, 0x20000")
    A(f"s_add_u32 s12, s24, s31\ns_addc_u32 s13, s25, 0\ns_mov_b32 s14, s32\ns_mov_b32 s15, 0x20000")
    A("v_and_b32 v12, 15, v31\nv_bfe_u32 v13, v31, 4, 1\nv_lshrrev_b32 v14, 5, v31\nv_lshl_add_u32 v13, v13, 1, v14")
    A("v_and_b32 v132, 7, v12\nv_lshlrev_b32 v132, 4, v132\nv_lshl_add_u32 v132, v13, 7, v132\nv_lshrrev_b32 v12, 3, v12\nv_lshl_add_u32 v132, v12, 9, v132\nv_add_u32 v133, %d, v132" % (32*KP))
    A("s_lshl_b32 s29, s27, 6\ns_lshl_b32 s30, s28, 2\ns_add_u32 s29, s29, s30\ns_add_u32 s29, s29, s26\ns_mul_i32 s36, s29, %d" % KP)
    A(f"s_and_b32 s47, s27, 14\ns_add_u32 s47, s47, s33\ns_add_u32 s47, s47, {F_B}\ns_lshl_b32 s47, s47, 10\ns_add_u32 s47, s47, s85")
    A(f"s_lshl_b32 s45, s28, 1\ns_add_u32 s45, s45, s33\ns_add_u32 s45, s45, {F_C}\ns_lshl_b32 s45, s45, 10")
    A(f"s_add_u32 s49, s27, {F_D}\ns_lshl_b32 s49, s49, 10\ns_add_u32 s49, s49, s85")
    A(f"s_mul_i32 s29, s33, {O_T1 - O_T0}\ns_add_u32 s29, s29, {O_T0}")
    A(f"s_add_u32 s16, s86, s29\ns_addc_u32 s17, s87, 0\ns_mov_b32 s18, {XFB}\ns_mov_b32 s19, 0x20000")
    if mbox:
        assert not packtail
        A(f"s_lshl_b32 s49, s27, 14\ns_lshl_b32 s30, s28, 1\ns_add_u32 s30, s30, s33\ns_lshl_b32 s30, s30, 2\ns_add_u32 s49, s49, s30\ns_add_u32 s49, s49, {MB + 4*128}\ns_add_u32 s49, s49, s85")
        msignal(A, "v_and_b32 v26, 1, v31\nv_lshlrev_b32 v26, 13, v26\nv_lshrrev_b32 v27, 1, v31\nv_lshl_add_u32 v26, v27, 15, v26", "s46", 16)
    else: signal(A, "s46", 16, also=("s101" if packtail else None))
    ST("g1_signaled")
    A(f"s_cmp_eq_u32 s60, 0\ns_cbranch_scc1 {name}_nocw")
    if mbox: mwait(A, 3, 16, extra=64)
    else: wait(A, "s45", None if packtail else 16)
    A(f"{name}_nocw:")
    vm2 = VmTrack()
    wslots = [0 + 8*k for k in range(8)] + [96 + 8*k for k in range(12)] + [224 + 8*k for k in range(4)]
    NWS = len(wslots)
    def wreg(t, j): return wslots[t % NWS] + 4*j
    def wload(t, j):
        A(f"buffer_load_dwordx4 {ar(wreg(t, j), 4)}, v128, s[12:15], s21 offen offset:{j*1024}")
        if j == 1: A("s_add_u32 s21, s21, 4096")
        vm2.issue(("W", t))
    def hdma(s, i):
        if i % 4 == 0:
            A(f"s_add_u32 m0, s22, {(s % 4)*SLOT2 + i*1024}\ns_nop 0")
        A(f"buffer_load_dwordx4 v{128 + i//4}, s[8:11], s20 offen offset:{(i%4)*1024} lds")
        if i == 7: A("s_add_u32 s20, s20, 32768")
        vm2.issue(("H", s))
    for t in range(g2P):
        for j in range(2): wload(t, j)
    if mbox: mwait(A, 3, 16, lay=True)
    else: wait(A, "s47")
    ST("g2_go")
    for s_ in range(2):
        for i in range(8): hdma(s_, i)
    def hread(q):
        if q >= 448: return
        base = "v130" if (q // 64) % 2 == 0 else "v131"
        A(f"ds_read_b128 {ar(HR + (q % R2)*4, 4)}, {base} offset:{(q % 64)*1024}")
    wq = {}
    for k, t_ in enumerate(range(g2P, 56)):
        pos = int(8*(max(1, t_ - NWS + 1) if False else 0) + 8*(g2T0 + g2rate*k))
        pos = max(pos, 8*(t_ - NWS + 1))
        assert pos + 4 <= 8*(t_ - 3), (t_, pos)
        wq.setdefault(pos, []).append((t_, 0)); wq.setdefault(pos + 4, []).append((t_, 1))
    vm2.wait("pro", [("H", 0)])
    A(f"s_waitcnt vmcnt({vm2.need['pro']})\ns_barrier")
    for q in range(D2): hread(q)
    lastn = None
    for t in range(56):
        s, st = t // 4, t % 4
        for x in range(8):
            pos = st*8 + x; q = t*8 + x
            w = []
            if x == 0 and t >= g2P - 1:
                vm2.wait(("w", t), [("W", t)]); w.append(vm2.need[("w", t)])
            isbar = (pos == g2bar and s < 13)
            if isbar:
                vm2.wait(("b", s), [("H", s+1)]); w.append(vm2.need[("b", s)])
            ww = [f"vmcnt({min(w)})"] if w and min(w) < 63 else []
            if x % 2 == 0: ww.append(f"lgkmcnt({min(D2-2, max(0, 448 - q - 2))})")
            if ww: A("s_waitcnt " + " ".join(ww))
            if isbar: A("s_barrier")
            for jj in range(2):
                j = jj if (x % 2 == 0 or not snake) else 1 - jj
                c = "0" if t == 0 else vr(acc2(x,j),4)
                A(f"v_mfma_f32_16x16x32_bf16 {vr(acc2(x,j),4)}, {ar(wreg(t,j),4)}, {ar(HR+(q%R2)*4,4)}, {c}")
                if jj == 0: hread(q + D2)
                else:
                    if pos in hpos and s + 2 < 14: hdma(s+2, hpos.index(pos))
                    for (t_, j_) in wq.get(q, []): wload(t_, j_)
    ST("g2_loopend")
    for x in range(8):
        a = acc2(x, 0); r = 32 + 4*x
        for e in range(4): A(f"v_cvt_pk_bf16_f32 v{r+e}, v{a+2*e}, v{a+2*e+1}")
        if x >= 1:
            pr = r - 4
            A(f"v_permlane16_swap_b32 v{pr}, v{pr+2}\nv_permlane16_swap_b32 v{pr+1}, v{pr+3}")
            A(f"buffer_store_dwordx4 {vr(pr,4)}, v{132 + (x-1)//4}, s[16:19], s36 offen offset:{((x-1)%4)*1024} {sf}")
    A(f"s_nop 1\nv_permlane16_swap_b32 v60, v62\nv_permlane16_swap_b32 v61, v63")
    A(f"buffer_store_dwordx4 v[60:63], v133, s[16:19], s36 offen offset:3072 {sf}")
    A("s_waitcnt lgkmcnt(0)")
    if mbox: msignal(A, "v_and_b32 v26, 1, v31\nv_lshlrev_b32 v26, 13, v26\nv_lshrrev_b32 v27, 1, v31\nv_lshl_add_u32 v26, v27, 10, v26", "s49", 16)
    else: signal(A, "s49", 16)
    ST("g2_signaled")
    A(f"s_cmp_eq_u32 s60, 0\ns_cbranch_scc1 {name}_fin")
    A(f"s_mov_b32 s60, 0\ns_mov_b32 s94, 32\ns_mov_b32 s85, {384 if mbox else 65536}\ns_add_u32 s86, s86, {LSTRIDE}\ns_addc_u32 s87, s87, 0")
    A(f"s_branch {name}_layer")
    A(f"{name}_fin:")
    tg_map(A)
    A(f"s_lshr_b32 s34, s3, 4\ns_add_u32 s34, s34, {F_D}\ns_lshl_b32 s34, s34, 10\ns_add_u32 s34, s34, s85")
    srd(A, 8, 86, XFB, O_T0)
    srd(A, 40, 86, XFB, O_T1)
    srd(A, 16, 82, 4 << 20)
    unstash_x()
    if mbox: mwait(A, 7, 16)
    else: wait(A, "s34")
    ST("fin_go")
    tloads()
    for i in range(4):
        A(f"s_waitcnt vmcnt({6 - 2*i + i})")
        tsum(i)
        A(f"buffer_store_dwordx4 {vr(RX+4*i,4)}, v13, s[16:19], s33 offen offset:{128*i}")
    if stamps:
        A("s_waitcnt vmcnt(0)")
        ST("end")
        srd(A, 8, 24, 1 << 20, WS_STAMP + (1 << 20))
        A("s_lshl_b32 s29, s2, 2\ns_add_u32 s29, s29, s26\ns_lshl_b32 s29, s29, 8\nv_lshlrev_b32 v1, 2, v31")
        A("buffer_store_dword v0, v1, s[8:11], s29 offen")
    A(f"{name}_end:\ns_endpgm")
    A(f"{name}_stats:")
    A("v_mov_b32 v160, 0\nv_mov_b32 v161, 0\nv_mov_b32 v162, 0\nv_mov_b32 v163, 0")
    for i in range(0, 16, 2):
        A(f"v_dot2c_f32_bf16 v160, s38, v{RX+i}\nv_dot2c_f32_bf16 v161, v{RX+i}, v{RX+i}")
        A(f"v_dot2c_f32_bf16 v162, s38, v{RX+i+1}\nv_dot2c_f32_bf16 v163, v{RX+i+1}, v{RX+i+1}")
    A("s_nop 2")
    A("v_pk_add_f32 v[160:161], v[160:161], v[162:163]")
    A("s_nop 1")
    A("v_add_f32_dpp v160, v160, v160 row_ror:8 row_mask:0xf bank_mask:0xf\nv_add_f32_dpp v161, v161, v161 row_ror:8 row_mask:0xf bank_mask:0xf")
    for sw in ("v_permlane16_swap_b32", "v_permlane32_swap_b32"):
        A("v_mov_b32 v162, v160\nv_mov_b32 v163, v161\ns_nop 1")
        A(f"{sw} v160, v162\n{sw} v161, v163")
        A("s_nop 0")
        A("v_pk_add_f32 v[160:161], v[160:161], v[162:163]")
    A(f"ds_write_b64 v14, v[160:161]\ns_waitcnt lgkmcnt(0)\ns_barrier")
    for k in range(2): A(f"ds_read_b128 {vr(Z+4*k,4)}, v15 offset:{16*k}")
    A("s_waitcnt lgkmcnt(0)")
    A(f"v_pk_add_f32 {vr(Z,2)}, {vr(Z,2)}, {vr(Z+2,2)}\nv_pk_add_f32 {vr(Z+4,2)}, {vr(Z+4,2)}, {vr(Z+6,2)}")
    A(f"v_pk_add_f32 v[160:161], {vr(Z,2)}, {vr(Z+4,2)}")
    A("v_mul_f32 v160, s48, v160\nv_mul_f32 v161, s48, v161\nv_fma_f32 v161, -v160, v160, v161\nv_max_f32 v161, 0, v161")
    round_bf16(A, 160); round_bf16(A, 161)
    A("v_add_f32 v161, s39, v161"); round_bf16(A, 161)
    A("v_sqrt_f32 v161, v161\ns_nop 0"); round_bf16(A, 161)
    A("v_rcp_f32 v162, v161\ns_nop 0\nv_mul_f32 v160, -v160, v162")
    A("s_setpc_b64 s[54:55]")
    A(f"{name}_codeend:")
    gen_mega.names = ST.names
    return kernel_desc(name, 512, 256, 102)
```
